```python
import torch

def _softmax(x, axis=-1):
    return torch.softmax(x, dim=axis)
def _gelu(x):
    return torch.nn.functional.gelu(x, approximate="tanh")
def _silu(x):
    return torch.nn.functional.silu(x)
def _sigmoid(x):
    return torch.sigmoid(x)
def _layernorm(x, axis=-1, eps=1e-5):
    m = x.mean(dim=axis, keepdim=True)
    v = x.var(dim=axis, keepdim=True, unbiased=False)
    return (x - m) / torch.sqrt(v + eps)
def _scatter_add(tgt, idx, src, axis=0):
    return tgt.clone().index_add_(axis, idx, src)
def _segment_sum(src, seg, n):
    out = torch.zeros((n,) + src.shape[1:], dtype=src.dtype)
    return out.index_add_(0, seg, src)
def _pad(x, pw):
    flat = tuple(v for pair in reversed(pw) for v in pair)
    return torch.nn.functional.pad(x, flat)

kernel_name = 'recurrent_scan__mha_block_cached__glu_gated_swiglu__prompt'

def setup_inputs():

    _w = (lambda a: (lambda t: t.to(torch.bfloat16) if t.is_floating_point() else t)(torch.as_tensor(a)))
    def _A_setup():
        B, Sq, D = 1, 2048, 512
        H, Sk, Dh = 32, 2048, 128
        return {
            "x": _w((lambda *s: torch.randn(*s, dtype=torch.bfloat16) * 0.05)(B, Sq, D)),
            "k_cache": _w((lambda *s: torch.randn(*s, dtype=torch.bfloat16) * 1.6)(B, H, Sk, Dh)),
            "v_cache": _w((lambda *s: torch.randn(*s, dtype=torch.bfloat16) * 1.6)(B, H, Sk, Dh)),
            "wq": _w((lambda *s: torch.randn(*s, dtype=torch.bfloat16) * 1.6)(D, H * Dh) * (D ** -0.5)),
            "wo": _w((lambda *s: torch.randn(*s, dtype=torch.bfloat16) * 1.6)(H * Dh, D) * ((H * Dh) ** -0.5)),
        }
    _A_in = _A_setup()

    def _B_setup():
        B, S, D, F = 1, 2048, 512, 1792
        return {
            "x": _w((lambda *s: torch.randn(*s, dtype=torch.bfloat16) * 0.05)(B, S, D)),
            "w1": _w((lambda *s: torch.randn(*s, dtype=torch.bfloat16) * 0.2)(D, F) * (2.0 / D) ** 0.5),
            "w3": _w((lambda *s: torch.randn(*s, dtype=torch.bfloat16) * 0.2)(D, F) * (2.0 / D) ** 0.5),
            "w2": _w((lambda *s: torch.randn(*s, dtype=torch.bfloat16) * 0.2)(F, D) * (2.0 / F) ** 0.5),
        }
    _B_in = _B_setup()

    return {
        "A_x": _A_in["x"],
        "A_k_cache": _A_in["k_cache"],
        "A_v_cache": _A_in["v_cache"],
        "A_wq": _A_in["wq"],
        "A_wo": _A_in["wo"],
        "B_x": _B_in["x"],
        "B_w1": _B_in["w1"],
        "B_w3": _B_in["w3"],
        "B_w2": _B_in["w2"],
    }

def reference(A_x, A_k_cache, A_v_cache, A_wq, A_wo, B_x, B_w1, B_w3, B_w2):
    def _A_ref(x, k_cache, v_cache, wq, wo):
        B, Sq, D = x.shape
        H, Dh = 32, 128
        q = (lambda x, *d: x.permute(*d))((x @ wq).reshape(B, Sq, H, Dh), 0, 2, 1, 3)
        scores = torch.einsum("bhqd,bhkd->bhqk", q, k_cache) * (Dh ** -0.5)
        p = _softmax(scores, axis=-1)
        o = torch.einsum("bhqk,bhkd->bhqd", p, v_cache)
        return (lambda x, *d: x.permute(*d))(o, 0, 2, 1, 3).reshape(B, Sq, H * Dh) @ wo

    def _B_ref(x, w1, w3, w2):
        gate = torch.einsum("bsd,df->bsf", x, w1)
        up = torch.einsum("bsd,df->bsf", x, w3)
        h = _silu(gate) * up
        out = torch.einsum("bsf,fd->bsd", h, w2)
        return out

    x = A_x
    xn = _layernorm(x, axis=-1)
    s = _A_ref(xn, A_k_cache, A_v_cache, A_wq, A_wo)
    g = _silu(_B_ref(xn, B_w1, B_w3, B_w2))
    return x + s * g
```

```python
import re

def R(kind, lo, n=1):
    return f"{kind}{lo}" if n == 1 else f"{kind}[{lo}:{lo+n-1}]"
def V(lo, n=1): return R("v", lo, n)
def A(lo, n=1): return R("a", lo, n)
def S(lo, n=1): return R("s", lo, n)

_reg_re = re.compile(r"^(-|abs\()?\|?([vas])(?:(\d+)|\[(\d+):(\d+)\])\|?\)?$")
def regs_of(op):
    op = op.strip()
    if op in ("vcc", "vcc_lo", "vcc_hi"): return [("s", "vcc")]
    if op in ("exec", "exec_lo", "exec_hi"): return [("s", "exec")]
    if op == "m0": return [("s", "m0")]
    m = _reg_re.match(op)
    if not m: return []
    k = m.group(2)
    if m.group(3) is not None: return [(k, int(m.group(3)))]
    return [(k, i) for i in range(int(m.group(4)), int(m.group(5)) + 1)]

TRANS = ("v_exp_f32", "v_log_f32", "v_rcp_f32", "v_rsq_f32", "v_sqrt_f32", "v_sin_f32", "v_cos_f32")
class Ins:
    def __init__(self, text):
        self.text = text
        t = text.split(";")[0].strip()
        self.label = t.endswith(":")
        self.directive = t.startswith(".") or t == ""
        self.mn = ""; self.w = []; self.r = []; self.kind = "other"
        self.srcA = []; self.srcB = []; self.srcC = []
        if self.label or self.directive: return
        parts = t.split(None, 1)
        mn = parts[0]; self.mn = mn
        rest = parts[1] if len(parts) > 1 else ""
        ops = [o.strip() for o in rest.split(",")] if rest else []
        mods = ""
        if ops:
            sp = ops[-1].split(None, 1)
            ops[-1] = sp[0]; mods = sp[1] if len(sp) > 1 else ""
        self.ops = ops; self.mods = mods
        rg = [regs_of(o) for o in ops]
        fl = lambda xs: [x for l in xs for x in l]
        if mn.startswith("v_mfma"):
            self.kind = "mfma"; self.w = rg[0]; self.srcA = rg[1]; self.srcB = rg[2]; self.srcC = rg[3]
            self.r = rg[1] + rg[2] + rg[3]; self.passes = 8 if "32x32" in mn else 4
        elif mn.startswith("v_smfmac"):
            self.kind = "mfma"; self.w = rg[0]; self.srcA = rg[1]; self.srcB = rg[2] + rg[3]; self.srcC = rg[0]
            self.r = rg[0] + rg[1] + rg[2] + rg[3]; self.passes = 8 if "32x32" in mn else 4
        elif mn.startswith("ds_read"):
            self.kind = "dsr"; self.w = rg[0]; self.r = rg[1]
        elif mn.startswith("ds_write"):
            self.kind = "dsw"; self.r = fl(rg)
        elif mn.startswith("ds_"):
            self.kind = "dsr"; self.w = rg[0]; self.r = fl(rg[1:])
        elif mn.startswith("buffer_load") or mn.startswith("global_load"):
            if " lds" in " " + mods or "_lds_" in mn:
                self.kind = "dma"; self.r = fl(rg) + [("s", "m0")]
            else:
                self.kind = "vld"; self.w = rg[0]; self.r = fl(rg[1:])
        elif mn.startswith("buffer_store") or mn.startswith("global_store"):
            self.kind = "vst"; self.r = fl(rg)
            self.data = rg[0] if mn.startswith("buffer") else rg[1]
            self.wide = ("x3" in mn or "x4" in mn)
        elif mn.startswith("buffer_atomic") or mn.startswith("global_atomic"):
            self.kind = "vst"; self.r = fl(rg); self.data = []; self.wide = False
            if "sc0" in mods: self.kind = "vld"; self.w = rg[0]
        elif mn.startswith("buffer_") :
            self.kind = "vst"; self.data = []; self.wide = False
        elif mn.startswith("v_cmp"):
            self.kind = "valu"; self.w = rg[0]; self.r = fl(rg[1:])
            if mn.startswith("v_cmpx"): self.w = self.w + [("s", "exec")]
        elif mn.startswith("v_permlane"):
            self.kind = "valu"; self.w = rg[0] + rg[1]; self.r = rg[0] + rg[1]
        elif mn.startswith("v_add_co") or mn.startswith("v_addc_co") or mn.startswith("v_sub_co"):
            self.kind = "valu"; self.w = rg[0] + rg[1]; self.r = fl(rg[2:])
        elif mn == "v_nop":
            self.kind = "other"
        elif mn.startswith("v_"):
            self.kind = "valu"; self.w = rg[0]; self.r = fl(rg[1:])
            if mn.startswith("v_fmac") or mn.startswith("v_dot2c") or "dpp" in mn or "row_" in mods or "quad_perm" in mods: self.r = self.r + rg[0]
        elif mn.startswith("s_load") or mn.startswith("s_memtime") or mn.startswith("s_memrealtime") or mn.startswith("s_atomic"):
            self.kind = "smem"; self.w = rg[0]; self.r = fl(rg[1:])
        elif mn.startswith("s_cmp") or mn.startswith("s_bitcmp"):
            self.kind = "salu"; self.r = fl(rg)
        elif mn in ("s_waitcnt", "s_barrier", "s_nop", "s_endpgm", "s_setprio", "s_sleep") or mn.startswith("s_cbranch") or mn == "s_branch":
            self.kind = "ctl"; self.rest = rest
        elif mn.startswith("s_"):
            self.kind = "salu"; self.w = rg[0] if rg else []; self.r = fl(rg[1:])
            if "saveexec" in mn: self.w = self.w + [("s", "exec")]
        self.trans = any(mn.startswith(x) for x in TRANS)
        self.dpp = ("dpp" in mn) or ("row_" in mods) or ("quad_perm" in mods)
    def states(self):
        if self.label or self.directive: return 0
        if self.mn == "s_nop": return int(self.rest.strip()) + 1
        return 1

def check(lines, name=""):
    ins = [Ins(l) for l in lines]
    ins = [i for i in ins if not (i.label or i.directive)]
    probs = []
    pos = []; p = 0
    for i in ins:
        pos.append(p); p += i.states()
    def dist(a, b): return pos[b] - pos[a] - ins[a].states()
    W = 40
    for b, y in enumerate(ins):
        yr = set(y.r); yw = set(y.w)
        for a in range(b - 1, max(-1, b - W), -1):
            x = ins[a]; d = dist(a, b)
            if d >= 20: break
            xw = set(x.w); need = 0; why = ""
            if x.kind == "valu" and y.kind == "mfma" and xw & yr: need, why = 2, "valu->mfma src"
            if x.kind == "mfma":
                n8 = {4: 8, 8: 12}[x.passes]; nov = {4: 6, 8: 10}[x.passes]; nwar = {4: 3, 8: 7}[x.passes]
                if y.kind == "mfma":
                    if xw & (set(y.srcA) | set(y.srcB)): need, why = n8, "mfma D->mfma A/B"
                    elif xw & set(y.srcC) and not (x.w == y.srcC and x.passes == y.passes): need, why = nov, "mfma D->mfma C overlap"
                    elif xw & yw and not (xw & set(y.srcC)): need, why = nov, "mfma D->mfma D WAW (conservative)"
                elif y.kind in ("valu", "vst", "dsw", "dsr", "vld", "dma"):
                    if xw & (yr | yw): need, why = n8, "mfma D->valu/mem"
                    elif y.kind == "valu" and set(x.srcC) & yw: need, why = nwar, "mfma C WAR"
            if x.kind == "valu" and x.trans and y.kind in ("valu",) and xw & yr and not y.trans: need, why = max(need, 1), why or "trans->valu"
            if x.kind == "valu" and x.trans and y.kind in ("vst", "dsw") and xw & yr: need, why = max(need, 1), why or "trans->mem"
            if x.kind == "valu" and y.mn.startswith("v_permlane") and xw & yr: need, why = max(need, 2), "valu->permlane"
            if x.kind == "valu" and y.dpp and xw & yr: need, why = max(need, 2), "valu->dpp"
            if x.kind == "valu" and (y.mn.startswith("v_readlane") or y.mn.startswith("v_readfirstlane")) and xw & yr: need, why = max(need, 1), "valu->readlane"
            sx = {r for r in xw if r[0] == "s"}
            if x.kind == "valu" and sx:
                if y.kind in ("vld", "vst", "dma") and sx & yr: need, why = max(need, 5), "valu sgpr->vmem"
                if y.kind == "valu" and sx & yr: need, why = max(need, 2), "valu sgpr->valu"
                if y.kind == "salu" and sx & yr: need, why = max(need, 1), "valu sgpr->salu (cons)"
                if ("s", "exec") in sx and y.kind == "mfma": need, why = max(need, 4), "exec->mfma"
            if x.kind == "salu" and ("s", "m0") in xw and y.kind == "dma": need, why = max(need, 1), "m0->dma"
            if x.kind == "vst" and x.wide and set(x.data) & yw: need, why = max(need, 2), "store data WAR"
            if need > d:
                probs.append(f"{name}: hazard[{why}] need {need} have {d}: '{x.text.strip()}' -> '{y.text.strip()}'")
    lg = []; vm = []
    for b, y in enumerate(ins):
        if y.mn == "s_waitcnt":
            m = re.search(r"vmcnt\((\d+)\)", y.rest)
            if m:
                n = int(m.group(1)); vm = vm[len(vm) - n:] if n < len(vm) and n > 0 else ([] if n == 0 else vm)
            m = re.search(r"lgkmcnt\((\d+)\)", y.rest)
            if m:
                n = int(m.group(1))
                if any(ins[i].kind == "smem" for i, _ in lg) and n > 0: pass
                else: lg = lg[len(lg) - n:] if n < len(lg) and n > 0 else ([] if n == 0 else lg)
            continue
        touch = set(y.r) | set(y.w)
        for q, nm in ((lg, "lgkm"), (vm, "vm")):
            for i, rs in q:
                if touch & rs:
                    probs.append(f"{name}: pending {nm} load '{ins[i].text.strip()}' touched by '{y.text.strip()}'")
        if y.kind in ("dsr", "smem"): lg.append((b, set(y.w)))
        elif y.kind == "dsw": lg.append((b, set()))
        elif y.kind == "vld": vm.append((b, set(y.w)))
        elif y.kind in ("vst", "dma"): vm.append((b, set()))
        if len(vm) > 63: probs.append(f"{name}: >63 vm outstanding at '{y.text.strip()}'")
        if y.kind in ("dsr", "dsw") and len(lg) > 15:
            pass
    return probs
```

```python
import sys, struct
sys.path.insert(0, "gen")
from asmlib import *

NAME = "recurrent_scan__mha_block_cached__glu_gated_swiglu__prompt"
XN_OFF = 0
H_OFF = 4 << 20
O_OFF = 16 << 20
WS_SIZE = 268435456
def f2u(x): return struct.unpack("<I", struct.pack("<f", x))[0]
def hx(x): return "0x%x" % x
QSCALE = 1.4426950408889634 / (128.0 ** 0.5)
LOG2E = 1.4426950408889634

class Cfg:
    stamps = False
cfg = Cfg()

def srd(L, s, plo, off_sgpr_or_none, size, off_hi=None):
    if off_sgpr_or_none is None:
        L += [f"s_mov_b32 s{s}, s{plo}", f"s_mov_b32 s{s+1}, s{plo+1}"]
    else:
        L += [f"s_add_u32 s{s}, s{plo}, {off_sgpr_or_none}", f"s_addc_u32 s{s+1}, s{plo+1}, 0"]
    L += [f"s_mov_b32 s{s+2}, {size}", f"s_mov_b32 s{s+3}, 0x20000"]

def kd(name, nv, acc, ns=96):
    return [".p2align 6", f".amdhsa_kernel {name}", f"  .amdhsa_next_free_vgpr {nv}", f"  .amdhsa_next_free_sgpr {ns}",
            f"  .amdhsa_accum_offset {acc}", "  .amdhsa_group_segment_fixed_size 0", "  .amdhsa_kernarg_size 96",
            "  .amdhsa_user_sgpr_count 2", "  .amdhsa_user_sgpr_kernarg_segment_ptr 1",
            "  .amdhsa_system_sgpr_workgroup_id_x 1", ".end_amdhsa_kernel"]
def khead(name):
    return [f".globl {name}", ".p2align 8", f".type {name},@function", f"{name}:"]

def mfma(d, a, b, c): return f"v_mfma_f32_16x16x32_bf16 {d}, {a}, {b}, {c}"

class VmTrack:
    def __init__(self): self.ops = []
    def add(self, tag): self.ops.append(tag)
    def need(self, pred):
        last = -1
        for i, t in enumerate(self.ops):
            if pred(t): last = i
        return len(self.ops) - 1 - last

def gen_ln():
    L = []
    L += ["s_cmp_ge_u32 s2, 128", "s_cbranch_scc1 L_ln_end",
          "s_load_dwordx2 s[4:5], s[0:1], 0", "s_load_dwordx2 s[6:7], s[0:1], 88",
          "s_lshl_b32 s3, s2, 14",
          "v_lshrrev_b32 v1, 4, v0", "v_and_b32 v2, 15, v0",
          "v_lshlrev_b32 v3, 10, v1", "v_lshl_add_u32 v3, v2, 4, v3",
          "v_lshrrev_b32 v4, 2, v2", "v_and_b32 v5, 3, v2",
          "v_lshlrev_b32 v4, 10, v4", "v_lshl_add_u32 v4, v5, 8, v4", "v_lshl_add_u32 v4, v1, 4, v4",
          "s_waitcnt lgkmcnt(0)"]
    srd(L, 8, 4, None, 2097152)
    srd(L, 12, 6, None, 2097152)
    for i in range(4): L.append(f"buffer_load_dwordx4 {V(8+4*i,4)}, v3, s[8:11], s3 offen offset:{256*i}")
    L.append("s_mov_b32 s16, 0xffff0000")
    for i in range(4):
        L.append(f"s_waitcnt vmcnt({3-i})")
        for j in range(4):
            r = 8 + 4*i + j
            L += [f"v_lshlrev_b32 v{32+2*(4*i+j)}, 16, v{r}", f"v_and_b32 v{33+2*(4*i+j)}, s16, v{r}"]
    L += ["v_add_f32 v24, v32, v33", "v_add_f32 v25, v34, v35"]
    for e in range(4, 32): L.append(f"v_add_f32 v{24 + e % 2}, v{24 + e % 2}, v{32+e}")
    L.append("v_add_f32 v24, v24, v25")
    def rowred(r):
        o = []
        for sh in (8, 4, 2, 1):
            o += ["s_nop 1", f"v_add_f32_dpp v{r}, v{r}, v{r} row_ror:{sh} row_mask:0xf bank_mask:0xf"]
        return o
    L += rowred(24)
    L.append(f"v_mul_f32 v24, {hx(f2u(1/512.))}, v24")
    L += ["v_mov_b32 v26, 0", "v_mov_b32 v27, 0"]
    for e in range(32):
        L += [f"v_sub_f32 v28, v{32+e}, v24", f"v_fmac_f32 v{26 + e % 2}, v28, v28"]
    L.append("v_add_f32 v26, v26, v27")
    L += rowred(26)
    L.append(f"v_mul_f32 v26, {hx(f2u(1/512.))}, v26")
    L += ["v_cvt_pk_bf16_f32 v24, v24, v26",
          "v_and_b32 v26, s16, v24", "v_lshlrev_b32 v24, 16, v24",
          f"v_add_f32 v26, {hx(f2u(1e-5))}, v26",
          "v_cvt_pk_bf16_f32 v26, v26, v26", "v_and_b32 v26, s16, v26",
          "v_sqrt_f32 v26, v26", "s_nop 0",
          "v_cvt_pk_bf16_f32 v26, v26, v26", "v_and_b32 v26, s16, v26",
          "v_rcp_f32 v26, v26"]
    for p in range(16):
        a, b = 32 + 2*p, 33 + 2*p
        L += [f"v_sub_f32 v{a}, v{a}, v24", f"v_sub_f32 v{b}, v{b}, v24", f"v_cvt_pk_bf16_f32 v28, v{a}, v{b}",
              f"v_lshlrev_b32 v{a}, 16, v28", f"v_and_b32 v{b}, s16, v28",
              f"v_mul_f32 v{a}, v{a}, v26", f"v_mul_f32 v{b}, v{b}, v26", f"v_cvt_pk_bf16_f32 v{8+p}, v{a}, v{b}"]
        if p % 4 == 3:
            i = p // 4
            L += [f"buffer_store_dwordx4 {V(8+4*i,4)}, v4, s[12:15], s3 offen", "s_add_u32 s3, s3, 4096"]
    L += ["L_ln_end:", "s_endpgm"]
    return L, L

sK, sV, sWQ, sW1, sW3, sXN, sH, sO = 8, 12, 16, 20, 24, 28, 32, 36
sM0A, sM0B, sM0V, sSoff, sSoff2, sQS, sTile = 40, 41, 42, 43, 44, 46, 48
sWave = 50
vAK, vAV = 4, 8
vDK, vDV = 16, 20
vAWQ, vAW13 = 24, 28
vDWQ, vDW13 = 32, 36
vOX = 40
vOH, vOO = 44, 48
vT = 52
vQ = 64
vP = 128
vS = 192
vC = 208
vOnes, vIdx = 224, 228
vE = 232
aO, aL, aK, aV = 0, 128, 144, 176
aX, aW = 128, 224
vAccQ, aAccF = 128, 0

def k1_setup():
    L = []
    L += ["s_cmp_ge_u32 s2, 256", "s_cbranch_scc1 L_k1_end",
          "s_load_dwordx4 s[52:55], s[0:1], 8",
          "s_load_dwordx2 s[56:57], s[0:1], 24",
          "s_load_dwordx4 s[60:63], s[0:1], 48",
          "s_load_dwordx2 s[58:59], s[0:1], 88",
          "s_and_b32 s64, s2, 7",
          "s_lshr_b32 s65, s2, 3",
          "s_and_b32 s66, s65, 3",
          "s_lshr_b32 s67, s65, 2",
          "s_lshl_b32 s68, s64, 2", "s_add_u32 s68, s68, s66",
          "s_mul_i32 s69, s64, 3", "s_add_u32 s69, s69, s66",
          "s_lshr_b32 s70, s64, 1", "s_add_u32 s70, s70, 24",
          "s_cmp_eq_u32 s66, 3", "s_cselect_b32 s69, s70, s69",
          "s_lshr_b32 s70, s67, 2", "s_xor_b32 s70, s70, s64", "s_and_b32 s70, s70, 1",
          "s_cmp_eq_u32 s66, 3", "s_cselect_b32 s70, s70, 0",
          "v_lshrrev_b32 v1, 6, v0", "v_and_b32 v0, 63, v0",
          f"v_readfirstlane_b32 s{sWave}, v1",
          "v_and_b32 v2, 15, v0", "v_lshrrev_b32 v3, 4, v0"]
    T = vT
    L += [f"v_lshlrev_b32 v{T}, 2, v3", f"v_xor_b32 v{T}, v{T}, v2", f"v_lshlrev_b32 v{T}, 4, v{T}",
          f"v_lshl_add_u32 v{T+1}, v1, 4, v3", f"v_lshl_add_u32 v{vDWQ}, v{T+1}, 13, v{T}"]
    for j in range(1, 4): L.append(f"v_add_u32 v{vDWQ+j}, {j*(4*8192-1024)}, v{vDWQ}")
    L += [f"v_lshrrev_b32 v{T}, 3, v0", f"v_and_b32 v{T+1}, 7, v0", f"v_and_b32 v{T+2}, 2, v{T}",
          f"v_xor_b32 v{T+1}, v{T+1}, v{T+2}",
          f"v_lshl_add_u32 v{T}, v1, 4, v{T}", f"v_mul_u32_u24 v{T}, 3584, v{T}",
          f"v_lshl_add_u32 v{vDW13}, v{T+1}, 4, v{T}",
          f"v_xor_b32 v{T+1}, 4, v{T+1}", f"v_lshl_add_u32 v{vDW13+1}, v{T+1}, 4, v{T}",
          f"v_add_u32 v{vDW13+1}, {8*3584-1024}, v{vDW13+1}"]
    L += [f"v_lshlrev_b32 v{T}, 16, v1", f"v_lshl_add_u32 v{vOX}, v0, 4, v{T}"]
    for q in range(1, 4): L.append(f"v_add_u32 v{vOX+q}, {q*16384}, v{vOX}")
    L += [f"s_lshl_b32 s{sM0A}, s{sWave}, 12", f"s_lshl_b32 s{sM0B}, s{sWave}, 11",
          f"s_add_u32 s{sM0B}, s{sM0B}, 65536", f"s_add_u32 s{sM0V}, s{sM0A}, 65536",
          "s_waitcnt lgkmcnt(0)"]
    L += ["s_lshl_b32 s71, s68, 8"]; srd(L, sWQ, 56, "s71", 4194304); L += [f"s_sub_u32 s{sWQ+2}, s{sWQ+2}, s71"]
    L += ["s_lshl_b32 s71, s69, 7"]
    srd(L, sW1, 60, "s71", 1835008); srd(L, sW3, 62, "s71", 1835008)
    L += [f"s_sub_u32 s{sW1+2}, s{sW1+2}, s71", "s_cmp_eq_u32 s70, 1", f"s_cselect_b32 s{sW1+2}, 0, s{sW1+2}", f"s_mov_b32 s{sW3+2}, s{sW1+2}"]
    L += ["s_lshl_b32 s71, s67, 18"]
    if XN_OFF: L += [f"s_add_u32 s71, s71, {XN_OFF}"]
    srd(L, sXN, 58, "s71", 262144)
    return L
def k1_setup2():
    L = []; T = vT
    L += ["s_lshl_b32 s71, s68, 19"]; srd(L, sK, 52, "s71", 524288); srd(L, sV, 54, "s71", 524288)
    L += [f"s_mul_i32 s71, s67, {16*57344}", "s_lshl_b32 s72, s69, 11", "s_add_u32 s71, s71, s72", f"s_add_u32 s71, s71, {H_OFF}"]
    srd(L, sH, 58, "s71", 16*57344)
    L += [f"s_sub_u32 s{sH+2}, s{sH+2}, s72", "s_cmp_eq_u32 s70, 1", f"s_cselect_b32 s{sH+2}, 0, s{sH+2}"]
    L += ["s_lshl_b32 s71, s67, 21", "s_lshl_b32 s72, s68, 12", "s_add_u32 s71, s71, s72", f"s_add_u32 s71, s71, {O_OFF}"]
    srd(L, sO, 58, "s71", 2097152); L += [f"s_sub_u32 s{sO+2}, s{sO+2}, s72"]
    L += [f"v_lshrrev_b32 v{T}, 2, v2", f"v_and_b32 v{T+1}, 3, v2", f"v_lshl_add_u32 v{T+2}, v3, 3, v{T}",
          f"v_lshlrev_b32 v{T+3}, 8, v{T+2}", f"v_lshl_add_u32 v{T+3}, v{T+1}, 4, v{T+3}"]
    for ds in range(4):
        L += [f"v_xor_b32 v{T+4}, {ds}, v{T}", f"v_lshl_add_u32 v{vAWQ+ds}, v{T+4}, 6, v{T+3}"]
    L += [f"v_lshrrev_b32 v{T+4}, 3, v2", f"v_and_b32 v{T+5}, 1, v3", f"v_lshl_add_u32 v{T+4}, v{T+5}, 1, v{T+4}",
          f"v_lshlrev_b32 v{T+3}, 7, v{T+2}", f"v_lshl_add_u32 v{T+3}, v{T+1}, 3, v{T+3}", f"v_add_u32 v{T+3}, 65536, v{T+3}"]
    for nt in range(4):
        L += [f"v_xor_b32 v{T+5}, {nt}, v{T+4}", f"v_lshl_add_u32 v{vAW13+nt}, v{T+5}, 5, v{T+3}"]
    L += [f"v_xor_b32 v{T+3}, v2, v3", f"v_lshlrev_b32 v{T+4}, 8, v2"]
    for ds in range(4):
        L += [f"v_xor_b32 v{T+5}, {4*ds}, v{T+3}", f"v_lshl_add_u32 v{vAK+ds}, v{T+5}, 4, v{T+4}"]
    L += [f"v_lshl_add_u32 v{T+2}, v3, 2, v{T}", f"v_and_b32 v{T+3}, 7, v{T+2}",
          f"v_lshlrev_b32 v{T+4}, 8, v{T+2}", f"v_lshl_add_u32 v{T+4}, v{T+1}, 3, v{T+4}", f"v_add_u32 v{T+4}, 65536, v{T+4}"]
    for dt in range(8):
        L += [f"v_xor_b32 v{T+5}, {dt}, v{T+3}", f"v_lshl_add_u32 v{vAV+dt}, v{T+5}, 5, v{T+4}"]
    L += [f"v_lshlrev_b32 v{T+3}, 12, v1", f"v_lshl_add_u32 v{T+3}, v3, 8, v{T+3}", f"v_xor_b32 v{T+4}, v2, v3"]
    for j in range(4):
        L += [f"v_xor_b32 v{T+5}, {4*j}, v{T+4}", f"v_lshl_add_u32 v{vDK+j}, v{T+5}, 4, v{T+3}"]
    L += [f"v_lshlrev_b32 v{T+4}, 1, v3", f"v_xor_b32 v{T+4}, v2, v{T+4}"]
    for j in range(2):
        L += [f"v_xor_b32 v{T+5}, {8*j}, v{T+4}", f"v_lshl_add_u32 v{vDV+j}, v{T+5}, 4, v{T+3}"]
    L += [f"s_mul_i32 s71, s{sWave}, {4*57344}", f"v_lshlrev_b32 v{T+3}, 4, v0", f"v_add_u32 v{vOH}, s71, v{T+3}",
          f"v_lshl_add_u32 v{vOO}, v1, 19, v{T+3}"]
    for q in range(1, 4):
        L += [f"v_add_u32 v{vOH+q}, {q*57344}, v{vOH}", f"v_add_u32 v{vOO+q}, {q*131072}, v{vOO}"]
    L += [f"s_mov_b32 s{sQS}, {hx(f2u(QSCALE))}", f"s_mov_b32 s{sQS+1}, {hx(f2u(QSCALE))}"]
    return L

def dma_w(c):
    sl = (c & 3) * 16384
    g = []
    g.append([f"s_add_u32 m0, s{sM0A}, {sl}", f"s_mov_b32 s{sSoff}, {c*524288}", f"buffer_load_dwordx4 v{vDWQ}, {S(sWQ,4)}, s{sSoff} offen lds"])
    for j in range(1, 4): g.append([f"buffer_load_dwordx4 v{vDWQ+j}, {S(sWQ,4)}, s{sSoff} offen offset:{1024*j} lds"])
    g.append([f"s_add_u32 m0, s{sM0B}, {sl}", f"s_mov_b32 s{sSoff}, {c*229376}", f"buffer_load_dwordx4 v{vDW13}, {S(sW1,4)}, s{sSoff} offen lds"])
    g.append([f"buffer_load_dwordx4 v{vDW13+1}, {S(sW1,4)}, s{sSoff} offen offset:1024 lds"])
    g.append([f"s_add_u32 m0, s{sM0B}, {sl+8192}", "s_nop 0", f"buffer_load_dwordx4 v{vDW13}, {S(sW3,4)}, s{sSoff} offen lds"])
    g.append([f"buffer_load_dwordx4 v{vDW13+1}, {S(sW3,4)}, s{sSoff} offen offset:1024 lds"])
    return g
def ld_x(c):
    g = []
    for qs in range(4):
        for ks in range(2):
            pre = [f"s_mov_b32 s{sSoff2}, {c*2048}"] if (qs == 0 and ks == 0) else []
            g.append(pre + [f"buffer_load_dwordx4 {A(aX + 32*(c%3) + 8*qs + 4*ks, 4)}, v{vOX+qs}, {S(sXN,4)}, s{sSoff2} offen" + (f" offset:{1024*ks}" if ks else "")])
    return g
def dma_k(n, soff):
    sl = (n & 3) * 16384
    g = [[f"s_add_u32 m0, s{sM0A}, {sl}"]]
    g += [[f"buffer_load_dwordx4 v{vDK+j}, {S(sK,4)}, {soff} offen" + (f" offset:{1024*j}" if j else "") + " lds"] for j in range(4)]
    return g
def dma_v(n, soff):
    sl = (n & 3) * 16384
    g = [[f"s_add_u32 m0, s{sM0V}, {sl}"]]
    g += [[f"buffer_load_dwordx4 v{vDV+(j&1)}, {S(sV,4)}, {soff} offen" + (f" offset:{1024*j}" if j else "") + " lds"] for j in range(4)]
    return g
def rd_w(gb):
    c, nt = gb >> 4, gb & 15
    sl = (c & 3) * 16384; buf = aW + 8 * (gb % 3); o = []
    for ks in range(2):
        for hf in range(2):
            d = A(buf + 4*ks + 2*hf, 2)
            if nt < 8: o.append(f"ds_read_b64_tr_b16 {d}, v{vAWQ + (nt>>1)} offset:{sl + ks*8192 + hf*1024 + 8*(nt&1)}")
            else: o.append(f"ds_read_b64_tr_b16 {d}, v{vAW13 + (nt&3)} offset:{sl + ((nt-8)>>2)*8192 + ks*4096 + hf*512}")
    return o
def flat(gs): return [x for g in gs for x in g]
def isvm(x): return x.startswith("buffer_")

def phaseA(vm):
    L = []
    def emit(xs, tag=None):
        for x in xs:
            L.append(x)
            if isvm(x): vm.add(tag)
    emit(flat(dma_w(0)), ("it", 0)); emit(flat(ld_x(0)), ("it", 0)); emit(flat(dma_w(1)), ("it", 1)); emit(flat(ld_x(1)), ("it", 1))
    emit(k1_setup2())
    emit([f"s_waitcnt vmcnt({vm.need(lambda t: t == ('it', 0))})", "s_barrier"])
    emit(rd_w(0) + rd_w(1) + ["s_waitcnt lgkmcnt(4)"])
    for c in range(8):
        it = c + 2
        if it < 8: G = [(g, ("it", it)) for g in dma_w(it)] + [(g, ("it", it)) for g in ld_x(it)]
        elif it == 8:
            g = dma_k(0, "0"); G = [(g[0] + ["s_nop 0"] + g[1], ("it", it))] + [(x, ("it", it)) for x in g[2:]]
        else:
            g = dma_k(1, f"s{sTile}"); G = [([f"s_movk_i32 s{sTile}, 16384"] + g[0] + ["s_nop 0"] + g[1], ("it", it))] + [(x, ("it", it)) for x in g[2:]]
            g = dma_v(1, "0"); G += [(g[0] + ["s_nop 0"] + g[1], ("it", it))] + [(x, ("it", it)) for x in g[2:]]
        for nt in range(16):
            gb = 16*c + nt
            rds = rd_w(gb + 2) if gb + 2 < 128 else []
            k = 0
            for qs in range(4):
                d = V(vAccQ + 16*nt + 4*qs, 4) if nt < 8 else A(aAccF + 16*(nt-8) + 4*qs, 4)
                for kk in range(2):
                    ks = kk if qs % 2 == 0 else 1 - kk
                    cc = "0" if (c == 0 and kk == 0) else d
                    emit([mfma(d, A(aW + 8*(gb%3) + 4*ks, 4), A(aX + 32*(c%3) + 8*qs + 4*ks, 4), cc)])
                    if k < 4 and rds: emit([rds[k]])
                    if k == 5 and nt < len(G): emit(G[nt][0], G[nt][1])
                    if k == 7:
                        if nt == 13 and c < 7:
                            emit([f"s_waitcnt vmcnt({vm.need(lambda t: t == ('it', c+1))}) lgkmcnt(4)", "s_barrier"])
                        elif gb + 2 < 128: emit(["s_waitcnt lgkmcnt(4)"])
                        elif gb + 1 < 128: emit(["s_waitcnt lgkmcnt(0)"])
                    k += 1
    emit([f"s_waitcnt vmcnt({vm.need(lambda t: t == ('it', 8))})", "s_barrier"])
    emit([f"s_mov_b32 s{sTile}, 32768", f"s_movk_i32 s{sTile+1}, 16384"])
    g = dma_k(2, f"s{sTile}"); emit(g[0] + ["s_nop 0"] + flat(g[1:]), ("it", 10))
    g = dma_v(2, f"s{sTile+1}"); emit(g[0] + ["s_nop 0"] + flat(g[1:]), ("it", 10))
    emit([f"ds_read_b128 {A(aK + 4*ds, 4)}, v{vAK+ds}" for ds in range(4)])
    emit([f"ds_read_b128 {A(aK + 16, 4)}, v{vAK} offset:4096"])
    for ds in range(4):
        for qs in range(4):
            for t in range(2):
                r = vAccQ + 16*(2*ds+t) + 4*qs
                emit([f"v_pk_mul_f32 {V(r,2)}, {V(r,2)}, {S(sQS,2)}", f"v_pk_mul_f32 {V(r+2,2)}, {V(r+2,2)}, {S(sQS,2)}"])
            for t in range(2):
                r = vAccQ + 16*(2*ds+t) + 4*qs; q = vQ + 16*qs + 4*ds + 2*t
                emit([f"v_cvt_pk_bf16_f32 v{q}, v{r}, v{r+1}", f"v_cvt_pk_bf16_f32 v{q+1}, v{r+2}, v{r+3}"])
    emit(["s_waitcnt lgkmcnt(0)"])
    for qs in range(4):
        d = V(vS + 4*qs, 4)
        for ds in range(4): emit([mfma(d, A(aK + 4*ds, 4), V(vQ + 16*qs + 4*ds, 4), "0" if ds == 0 else d)])
    emit([f"s_mov_b32 s71, {hx(f2u(-LOG2E))}"])
    for qs in range(4):
        for pr in range(2):
            dst = vP + 8*qs + 4*pr
            G_, U_, E_ = vP + 32, vP + 40, vP + 48
            for t in range(2):
                for r in range(4):
                    emit([f"v_accvgpr_read_b32 v{G_+4*t+r}, a{aAccF + 16*(2*pr+t) + 4*qs + r}",
                          f"v_accvgpr_read_b32 v{U_+4*t+r}, a{aAccF + 64 + 16*(2*pr+t) + 4*qs + r}"])
            for e in range(8): emit([f"v_mul_f32 v{E_+e}, s71, v{G_+e}"])
            for e in range(8): emit([f"v_exp_f32 v{E_+e}, v{E_+e}"])
            for e in range(0, 8, 2): emit([f"v_pk_mul_f32 {V(G_+e,2)}, {V(G_+e,2)}, {V(U_+e,2)}"])
            for e in range(8): emit([f"v_add_f32 v{E_+e}, 1.0, v{E_+e}"])
            for e in range(8): emit([f"v_rcp_f32 v{E_+e}, v{E_+e}"])
            emit(["s_nop 0"])
            for e in range(0, 8, 2): emit([f"v_pk_mul_f32 {V(G_+e,2)}, {V(G_+e,2)}, {V(E_+e,2)}"])
            for e in range(0, 8, 2): emit([f"v_cvt_pk_bf16_f32 v{dst+e//2}, v{G_+e}, v{G_+e+1}"])
            emit([f"buffer_store_dwordx4 {V(dst,4)}, v{vOH+qs}, {S(sH,4)}, 0 offen" + (" offset:1024" if pr else "")], ("h",))
    T = vT
    for qs in range(4):
        s = vS + 4*qs
        emit([f"v_max3_f32 v{T+qs}, v{s}, v{s+1}, v{s+2}", f"v_max_f32 v{T+qs}, v{T+qs}, v{s+3}"])
    for sw in ("v_permlane32_swap_b32", "v_permlane16_swap_b32"):
        for qs in range(4): emit([f"v_mov_b32 v{T+4+qs}, v{T+qs}"])
        emit(["s_nop 0"])
        for qs in range(4): emit([f"{sw} v{T+qs}, v{T+4+qs}"])
        for qs in range(4): emit([f"v_max_f32 v{T+qs}, v{T+qs}, v{T+4+qs}"])
    for qs in range(4):
        for r in range(4): emit([f"v_sub_f32 v{vC+4*qs+r}, 0, v{T+qs}"])
    for r in range(4): emit([f"v_mov_b32 v{vOnes+r}, 0x3f803f80"])
    emit([f"v_and_b32 v{T}, 1, v0", f"v_mul_u32_u24 v{T}, 0xaaaa, v{T}", f"v_add_u32 v{vIdx}, 0x4444, v{T}"])
    for r in range(16): emit([f"v_accvgpr_write_b32 a{aL+r}, 0"])
    return L

NT = 32
def attn_iter(i, vmwait):
    L = []
    qk = i + 1 < NT; pv = i >= 0
    Pn = vP + 32 * ((i + 1) & 1); Pc = vP + 32 * (i & 1)
    def item(n):
        g = []
        if n < NT: g += [[f"s_add_u32 s{sTile}, s{sTile}, 16384"]] + dma_k(n, f"s{sTile}")
        else: g += [[]] * 6
        if n - 1 < NT: g += [[f"s_add_u32 s{sTile+1}, s{sTile+1}, 16384"]] + dma_v(n, f"s{sTile+1}")
        else: g += [[]] * 6
        return g
    plan = [(11, 7), (12, 5), (12, 7), (14, 5), (0, 5), (2, 5), (3, 5), (3, 7), (4, 5), (6, 5), (8, 5), (10, 5)]
    extra = {}
    gnew = item(i + 4); gold = item(i + 3) if i > -1 else [[]] * 12
    for k, (b, gp) in enumerate(plan):
        extra.setdefault((b, gp), []).extend(gnew[k] if b >= 11 else gold[k])
    for b in range(16):
        kt, qs = b >> 2, b & 3
        M = []
        if qk:
            d = V(vS + 4*(b & 3), 4)
            order = range(4) if qs % 2 == 0 else range(3, -1, -1)
            for n, ds in enumerate(order):
                M.append(mfma(d, A(aK + 16*(kt & 1) + 4*ds, 4), V(vQ + 16*qs + 4*ds, 4), V(vC + 4*qs, 4) if n == 0 else d))
        else: M += [None] * 4
        if pv:
            dt = b >> 1
            for h in range(2):
                q2 = 2*(b & 1) + h
                d = A(aO + 16*dt + 4*q2, 4)
                for kk in range(2):
                    ks = kk if h == 0 else 1 - kk
                    M.append(mfma(d, A(aV + 8*(dt & 1) + 4*ks, 4), V(Pc + 8*q2 + 4*ks, 4), "0" if (i == 0 and kk == 0) else d))
        else: M += [None] * 4
        G = [[] for _ in range(8)]
        if b > 0: sm, pb, Pd = qk, b - 1, Pn
        else: sm, pb, Pd = pv, 15, Pc
        if sm:
            s = vS + 4*(pb & 3); pk, pq = pb >> 2, pb & 3
            pd = Pd + 8*pq + 4*(pk >> 1) + 2*(pk & 1)
            for r in range(4): G[2*r].append(f"v_exp_f32 v{s+r}, v{s+r}")
        if b % 2 == 0: G[1].append("s_waitcnt lgkmcnt(1)")
        if b == 11 and i + 1 < NT:
            G[1] += [f"s_waitcnt vmcnt({vmwait})", "s_barrier"]
        dtn = (b >> 1) + 1; vt = i
        if dtn == 8: dtn, vt = 0, i + 1
        if 0 <= vt < NT:
            ks = b & 1; sl = ((vt + 1) & 3) * 16384
            for hf in range(2):
                G[1 + 2*hf].append(f"ds_read_b64_tr_b16 {A(aV + 8*(dtn & 1) + 4*ks + 2*hf, 2)}, v{vAV+dtn} offset:{sl + ks*8192 + hf*4096}")
        if sm: G[3].append(f"v_cvt_pk_bf16_f32 v{pd}, v{s}, v{s+1}")
        u = b + 1; ktn, j, ktile = (u >> 2) + 1, u & 3, i + 1
        if ktn >= 4: ktn, ktile = ktn - 4, i + 2
        if ktile < NT:
            G[5].append(f"ds_read_b128 {A(aK + 16*(ktn & 1) + 4*j, 4)}, v{vAK+j} offset:{(ktile & 3)*16384 + ktn*4096}")
        elif b % 2 == 1:
            G[7].append("s_waitcnt lgkmcnt(0)")
        if sm: G[7].append(f"v_cvt_pk_bf16_f32 v{pd+1}, v{s+2}, v{s+3}")
        for gp in range(8): G[gp] += extra.get((b, gp), [])
        for n in range(8):
            if M[n] is not None: L.append(M[n])
            elif n in (3, 7) and sm: L.append("s_nop 0")
            L += G[n]
        if pv and b in (2, 6, 10, 14):
            q2 = b >> 2
            L.append(f"v_smfmac_f32_16x16x64_bf16 {A(aL + 4*q2, 4)}, {V(vOnes,4)}, {V(Pc + 8*q2, 8)}, v{vIdx}")
        if not pv: L.append("s_nop 1" if b else "s_nop 6")
    return L

def attn_epilogue():
    L = ["s_nop 7"]
    T = vT
    for qs in range(4): L += [f"v_accvgpr_read_b32 v{T+2*qs}, a{aL+4*qs}", f"v_accvgpr_read_b32 v{T+2*qs+1}, a{aL+4*qs+1}"]
    for qs in range(4): L += [f"v_add_f32 v{T+2*qs}, v{T+2*qs}, v{T+2*qs+1}"]
    for qs in range(4): L += [f"v_rcp_f32 v{T+2*qs}, v{T+2*qs}"]
    L += ["s_nop 0"]
    for qs in range(4): L += [f"v_mov_b32 v{T+2*qs+1}, v{T+2*qs}"]
    n = 0
    for j in range(4):
        for qs in range(4):
            E = vP + 8*(n % 4); D = vP + 32 + 4*(n % 8); n += 1
            for t in range(2):
                for r in range(4): L.append(f"v_accvgpr_read_b32 v{E+4*t+r}, a{aO + 16*(2*j+t) + 4*qs + r}")
            for e in range(0, 8, 2): L.append(f"v_pk_mul_f32 {V(E+e,2)}, {V(E+e,2)}, {V(T+2*qs,2)}")
            for e in range(0, 8, 2): L.append(f"v_cvt_pk_bf16_f32 v{D+e//2}, v{E+e}, v{E+e+1}")
            L.append(f"buffer_store_dwordx4 {V(D,4)}, v{vOO+qs}, {S(sO,4)}, 0 offen" + (f" offset:{1024*j}" if j else ""))
    return L

def stamp(n):
    if not cfg.stamps: return []
    return [f"s_memtime s[{76+2*n}:{77+2*n}]"]

def gen_k1():
    vm = VmTrack()
    pre = k1_setup() + phaseA(vm)
    its = {}
    def track(lines, i):
        pass
    its[-1] = attn_iter(-1, vm.need(lambda t: t == ("it", 9)))
    its[0] = attn_iter(0, 8)
    for i in range(1, NT):
        n = i + 3
        cnt = (4 if n < NT else 0) + (4 if n - 1 < NT else 0)
        its[i] = attn_iter(i, cnt)
    epi = attn_epilogue()
    trace = pre + flat([its[i] for i in range(-1, NT)]) + epi
    text = pre + its[-1] + its[0]
    blk = flat([its[i] for i in range(1, 5)])
    nrep = 0
    while flat([its.get(i, ["x"]) for i in range(1 + 4*nrep, 5 + 4*nrep)]) == blk: nrep += 1
    text += [f".rept {nrep}"] + blk + [".endr"]
    for i in range(1 + 4*nrep, NT): text += its[i]
    text += epi + ["L_k1_end:", "s_endpgm"]
    return text, trace

def gen_k2():
    L = []; vm = VmTrack()
    sWO, sW2, sHh, sOo, sX, sOut = 8, 12, 16, 20, 24, 28
    sM0, sSo, sSb, sWoB, sW2B = 40, 41, 42, 43, 44
    vAR, vDW, vBH, vBO, vWr, vXo = 4, 8, 12, 16, 20, 22
    accF, accS, aB, aA = 128, 192, 0, 128
    T = 24
    def emit(xs, tag=None):
        for x in xs:
            L.append(x)
            if isvm(x): vm.add(tag)
    emit(["s_cmp_ge_u32 s2, 256", "s_cbranch_scc1 L_k2_end",
          "s_load_dwordx2 s[52:53], s[0:1], 0", "s_load_dwordx2 s[54:55], s[0:1], 32",
          "s_load_dwordx4 s[56:59], s[0:1], 64", "s_load_dwordx2 s[60:61], s[0:1], 88",
          "s_and_b32 s64, s2, 7", "s_lshr_b32 s65, s2, 3", "s_and_b32 s66, s65, 3", "s_lshr_b32 s67, s65, 2",
          "s_lshl_b32 s68, s64, 2", "s_add_u32 s68, s68, s66",
          "v_lshrrev_b32 v1, 6, v0", "v_and_b32 v0, 63, v0", f"v_readfirstlane_b32 s{sWave}, v1",
          "v_and_b32 v2, 15, v0", "v_lshrrev_b32 v3, 4, v0"])
    emit([f"v_lshrrev_b32 v{T}, 3, v0", f"v_and_b32 v{T+1}, 7, v0", f"v_and_b32 v{T+2}, 6, v{T}", f"v_xor_b32 v{T+1}, v{T+1}, v{T+2}",
          f"v_lshlrev_b32 v{T}, 10, v{T}", f"v_lshl_add_u32 v{vDW}, v{T+1}, 4, v{T}"])
    for j in range(1, 4): emit([f"v_add_u32 v{vDW+j}, {7168*j}, v{vDW}"])
    emit([f"v_lshlrev_b32 v{T}, 4, v0", f"v_mul_u32_u24 v{T+1}, 14336, v1", f"v_add_u32 v{vBH}, v{T}, v{T+1}", f"v_lshl_add_u32 v{vBO}, v1, 15, v{T}"])
    for q in range(1, 4): emit([f"v_add_u32 v{vBH+q}, {57344*q}, v{vBH}", f"v_add_u32 v{vBO+q}, {131072*q}, v{vBO}"])
    emit([f"s_lshl_b32 s{sM0}, s{sWave}, 15", f"s_lshl_b32 s{sWoB}, s{sWave}, 20", f"s_mul_i32 s{sW2B}, s{sWave}, 458752", "s_waitcnt lgkmcnt(0)"])
    emit(["s_lshl_b32 s71, s67, 7"])
    srd(L, sW2, 56, "s71", 1835008); emit([f"s_sub_u32 s{sW2+2}, s{sW2+2}, s71"])
    srd(L, sWO, 54, "s71", 4194304); emit([f"s_sub_u32 s{sWO+2}, s{sWO+2}, s71"])
    emit([f"s_mul_i32 s72, s68, {4*57344}", f"s_add_u32 s72, s72, {H_OFF}"]); srd(L, sHh, 60, "s72", 4*57344)
    emit(["s_lshl_b32 s72, s68, 19", f"s_add_u32 s72, s72, {O_OFF}"]); srd(L, sOo, 60, "s72", 524288)
    NC = 23
    def loads(n):
        f = n < 7; c = n if f else n - 7
        g = []
        for hh in range(2):
            pre = [f"s_add_u32 m0, s{sM0}, {(n & 3)*8192 + hh*4096}", f"s_add_u32 s{sSo}, s{sW2B if f else sWoB}, {c*65536 + hh*32768}"]
            for j in range(4):
                g.append((pre if j == 0 else []) + [f"buffer_load_dwordx4 v{vDW+j}, {S(sW2 if f else sWO,4)}, s{sSo} offen" + (f" offset:{1024*j}" if j else "") + " lds"])
        for qs in range(4):
            for ks in range(2):
                pre = [f"s_movk_i32 s{sSb}, {c*2048}"] if qs + ks == 0 else []
                g.append(pre + [f"buffer_load_dwordx4 {A(aB + 32*(n & 3) + 8*qs + 4*ks, 4)}, v{(vBH if f else vBO)+qs}, {S(sHh if f else sOo,4)}, s{sSb} offen" + (f" offset:{1024*ks}" if ks else "")])
        return g
    for n in range(3): emit(flat(loads(n)), n)
    emit([f"v_lshrrev_b32 v{T}, 2, v2", f"v_and_b32 v{T+1}, 3, v2", f"v_lshl_add_u32 v{T+2}, v3, 2, v{T}",
          f"v_lshrrev_b32 v{T+3}, 1, v{T+2}", f"v_and_b32 v{T+3}, 3, v{T+3}",
          f"v_lshlrev_b32 v{T+4}, 7, v{T+2}", f"v_lshl_add_u32 v{T+4}, v{T+1}, 3, v{T+4}", f"v_lshl_add_u32 v{T+4}, v1, 15, v{T+4}"])
    for nt in range(4): emit([f"v_xor_b32 v{T+5}, {nt}, v{T+3}", f"v_lshl_add_u32 v{vAR+nt}, v{T+5}, 5, v{T+4}"])
    emit([f"v_lshlrev_b32 v{T}, 4, v0", f"v_lshl_add_u32 v{vWr}, v1, 15, v{T}", f"v_lshl_add_u32 v{vWr+1}, v1, 12, v{T}"])
    emit([f"v_lshl_add_u32 v{T}, v1, 4, v2", f"v_lshlrev_b32 v{T}, 10, v{T}", f"v_lshl_add_u32 v{vXo}, v3, 3, v{T}",
          "s_lshl_b32 s72, s68, 16", "s_add_u32 s72, s72, s71"])
    srd(L, sX, 52, "s72", 2097152); srd(L, sOut, 58, "s72", 2097152)
    emit([f"s_sub_u32 s{sX+2}, s{sX+2}, s72", f"s_mov_b32 s{sOut+2}, s{sX+2}"])
    def rd(gb):
        n, nt = gb >> 2, gb & 3; o = []
        for ks in range(2):
            for hf in range(2):
                o.append(f"ds_read_b64_tr_b16 {A(aA + 8*(gb % 3) + 4*ks + 2*hf, 2)}, v{vAR+nt} offset:{(n & 3)*8192 + ks*4096 + hf*2048}")
        return o
    emit([f"s_waitcnt vmcnt({vm.need(lambda t: t == 0)})"])
    emit(rd(0) + rd(1) + ["s_waitcnt lgkmcnt(4)"])
    for n in range(NC):
        G = loads(n + 3) if n + 3 < NC else []
        if n == NC - 3: G = [[f"buffer_load_dwordx2 {V(32+2*nt,2)}, v{vXo}, {S(sX,4)}, 0 offen offset:{32*nt}"] for nt in range(4)]
        gi = 0
        acc = accF if n < 7 else accS
        for nt in range(4):
            gb = 4*n + nt
            rds = rd(gb + 2) if gb + 2 < 4*NC else []
            k = 0
            for qs in range(4):
                d = V(acc + 16*qs + 4*nt, 4)
                for kk in range(2):
                    ks = kk if qs % 2 == 0 else 1 - kk
                    emit([mfma(d, A(aA + 8*(gb % 3) + 4*ks, 4), A(aB + 32*(n & 3) + 8*qs + 4*ks, 4), "0" if (n in (0, 7) and kk == 0) else d)])
                    if k < 4 and rds: emit([rds[k]])
                    if k >= 4 and gi < len(G): emit(G[gi], n + 3); gi += 1
                    if k == 7:
                        w = "lgkmcnt(4)" if gb + 2 < 4*NC else "lgkmcnt(0)"
                        if nt == 1 and n + 1 < NC: w = f"vmcnt({vm.need(lambda t: t == n + 1)}) " + w
                        emit([f"s_waitcnt {w}"])
                    k += 1
    emit(["s_nop 7"])
    for m, acc in enumerate((accF, accS)):
        for qs in range(4):
            for nt in range(4):
                emit([f"ds_write_b128 v{vWr}, {V(acc + 16*qs + 4*nt, 4)} offset:{m*16384 + qs*4096 + nt*1024}"])
    emit([f"v_add_u32 v{vWr}, 65536, v{vWr+1}", "s_waitcnt lgkmcnt(0)", "s_barrier"])
    for m in range(2):
        for w in range(4):
            for nt in range(4):
                emit([f"ds_read_b128 {V(128 + 64*m + 16*w + 4*nt, 4)}, v{vWr + (1 if w < 2 else 0)} offset:{(w & 1)*32768 + m*16384 + nt*1024}"])
        emit(["s_waitcnt lgkmcnt(0)"])
        b = 128 + 64*m
        for e in range(0, 16, 2):
            emit([f"v_pk_add_f32 {V(b+e,2)}, {V(b+e,2)}, {V(b+16+e,2)}", f"v_pk_add_f32 {V(b+32+e,2)}, {V(b+32+e,2)}, {V(b+48+e,2)}"])
        for e in range(0, 16, 2): emit([f"v_pk_add_f32 {V(b+e,2)}, {V(b+e,2)}, {V(b+32+e,2)}"])
    F_, S_, E_, X_ = 128, 192, 144, 160
    emit([f"s_mov_b32 s71, {hx(f2u(-LOG2E))}", "s_mov_b32 s72, 0xffff0000"])
    for e in range(16): emit([f"v_mul_f32 v{E_+e}, s71, v{F_+e}"])
    for e in range(16): emit([f"v_exp_f32 v{E_+e}, v{E_+e}"])
    for e in range(0, 16, 2): emit([f"v_pk_mul_f32 {V(F_+e,2)}, {V(F_+e,2)}, {V(S_+e,2)}"])
    for e in range(16): emit([f"v_add_f32 v{E_+e}, 1.0, v{E_+e}"])
    for e in range(16): emit([f"v_rcp_f32 v{E_+e}, v{E_+e}"])
    emit(["s_waitcnt vmcnt(0)"])
    for p in range(8): emit([f"v_lshlrev_b32 v{X_+2*p}, 16, v{32+p}", f"v_and_b32 v{X_+2*p+1}, s72, v{32+p}"])
    for e in range(16): emit([f"v_fmac_f32 v{X_+e}, v{F_+e}, v{E_+e}"])
    for p in range(8): emit([f"v_cvt_pk_bf16_f32 v{32+p}, v{X_+2*p}, v{X_+2*p+1}"])
    for nt in range(4): emit([f"buffer_store_dwordx2 {V(32+2*nt,2)}, v{vXo}, {S(sOut,4)}, 0 offen offset:{32*nt}"])
    emit(["L_k2_end:", "s_endpgm"])
    return L, L

def main(path):
    hdr = open(f"cdna_kernels/{NAME}.s.ref").read().split("\n")
    hdr = [h for h in hdr if h.startswith(";") and "@launch" not in h and "Override launch" not in h and "grid=ceil" not in h]
    out = hdr + ["; @launch kernel=ln_kernel grid=(128,1,1) block=(256,1,1) lds=0",
                 "; @launch kernel=attn_kernel grid=(256,1,1) block=(256,1,1) lds=131072",
                 "; @launch kernel=outp_kernel grid=(256,1,1) block=(256,1,1) lds=131072",
                 '.amdgcn_target "amdgcn-amd-amdhsa--gfx950"', ".text"]
    bad = 0
    for nm, g in (("ln_kernel", gen_ln), ("attn_kernel", gen_k1), ("outp_kernel", gen_k2)):
        text, trace = g()
        pr = check(trace, nm)
        for p in pr[:30]: print(p)
        bad += len(pr)
        out += khead(nm) + text
    out += ['.section .rodata,"a"'] + kd("ln_kernel", 64, 64) + kd("attn_kernel", 512, 256) + kd("outp_kernel", 512, 256)
    open(path, "w").write("\n".join(out) + "\n")
    print("problems:", bad, "lines:", len(out))
if __name__ == "__main__":
    main(sys.argv[1] if len(sys.argv) > 1 else f"cdna_kernels/{NAME}.s")
```

```python
import sys, struct
sys.path.insert(0, "gen")
from asmlib import *

NAME = "recurrent_scan__mha_block_cached__glu_gated_swiglu__prompt"
XN_OFF = 0
H_OFF = 4 << 20
O_OFF = 16 << 20
P_OFF = 32 << 20
DIAG_OFF = 64 << 20
WS_SIZE = 268435456
def f2u(x): return struct.unpack("<I", struct.pack("<f", x))[0]
def hx(x): return "0x%x" % x
QSCALE = 1.4426950408889634 / (128.0 ** 0.5)
LOG2E = 1.4426950408889634
NT = 32

class Cfg:
    stamps = False
    nodma = False
    kvmod = 0
    forcefb = False
cfg = Cfg()

sK, sV, sWQ, sW1, sW3, sXN, sH, sO = 8, 12, 16, 20, 24, 28, 32, 36
sW2, sWO, sHr, sOr = 16, 20, 24, 28
sPw, sX, sOut = 8, 12, 32
sM0A, sM0B, sM0V, sSoff, sSoff2, sCnt, sQS, sTile = 40, 41, 42, 43, 44, 45, 46, 48
sWave, sRetry = 50, 51
pK, pV, pWQ, pWO = 52, 54, 56, 58
pW1, pW3, pW2, pOut, pDbg, pWS = 60, 62, 64, 66, 68, 70
pX = 72
sXcd, sHl, sB, sHead, sJ, sInact, sT0, sT1, sT2 = 74, 75, 76, 77, 78, 79, 80, 81, 82
sSplit, sRb, sCb, sLoop, sHinc = 83, 84, 85, 86, 87
sDbg = 88
vAK, vAV = 4, 8
vDK, vDV = 16, 20
vBH = 22
vAWQ, vAW13, vDWQ, vDW13, vOX, vOH = 24, 28, 32, 36, 40, 44
vAC = 24
vOO = 48
vT = 52
vPoll = 60
vQ, vP, vS, vC, vOnes, vIdx = 64, 128, 192, 208, 224, 228
vBO, vTouch, vDC, vZero = 229, 231, 232, 236
vPW, vXo = 237, 238
aO, aL, aK, aV = 0, 128, 144, 176
aX, aW = 128, 224
vAccQ, aAccF = 128, 0
vAccF, vAccS, vFr = 64, 128, 192
SLOT = [0, 8, 9, 1, 5, 2, 6, 7, 4, 3]
VOTE = 3 * 16384
def hreg(c):
    return ("a", 192 + 16*c) if c < 4 else (("a", 144 + 16*(c-4)) if c < 6 else ("v", 240))

def srd(s, plo, off, size):
    if off is None: L = [f"s_mov_b32 s{s}, s{plo}", f"s_mov_b32 s{s+1}, s{plo+1}"]
    else: L = [f"s_add_u32 s{s}, s{plo}, {off}", f"s_addc_u32 s{s+1}, s{plo+1}, 0"]
    return L + [f"s_mov_b32 s{s+2}, {size}", f"s_mov_b32 s{s+3}, 0x20000"]
def mfma(d, a, b, c): return f"v_mfma_f32_16x16x32_bf16 {d}, {a}, {b}, {c}"
def flat(gs): return [x for g in gs for x in g]
def isvm(x): return x.startswith("buffer_")
def off(n): return f" offset:{n}" if n else ""

def stamp(n):
    if not cfg.stamps: return []
    return ["s_memtime s[92:93]", "s_memrealtime s[94:95]", "s_waitcnt lgkmcnt(0)",
            f"v_writelane_b32 v62, s92, {n}", f"v_writelane_b32 v63, s94, {n}"]
def stamp_flush():
    if not cfg.stamps: return []
    L = ["s_waitcnt vmcnt(0)"] + stamp(31)
    L += ["s_lshl_b32 s92, s2, 11", f"s_lshl_b32 s93, s{sWave}, 9", "s_add_u32 s92, s92, s93", f"s_add_u32 s92, s92, {DIAG_OFF}"]
    L += srd(96, pWS, None, WS_SIZE)
    L += ["v_lshlrev_b32 v61, 3, v0", "buffer_store_dwordx2 v[62:63], v61, s[96:99], s92 offen"]
    return L

class Em:
    def __init__(self): self.L = []; self.ops = []
    def __call__(self, xs, tag=None):
        for x in xs:
            self.L.append(x)
            if isvm(x) and ";nt" not in x and tag != "sig": self.ops.append(tag)
    def need(self, *tags):
        last = -1
        for i, t in enumerate(self.ops):
            if t in tags: last = i
        assert last >= 0, tags
        return min(63, len(self.ops) - 1 - last)
    def take(self):
        r = self.L; self.L = []; return r

uid = [0]
def signal(dw_sgpr, inc):
    return [f"v_mov_b32 v{vPoll}, {inc}", f"buffer_atomic_add v{vPoll}, v{vZero}, {S(sDbg,4)}, s{dw_sgpr} offen sc1"]
def spin(dw_sgpr, shift, target):
    uid[0] += 1; u = uid[0]
    return [f"s_cmp_lg_u32 s{sWave}, 0", f"s_cbranch_scc1 L_spin_done{u}", f"s_mov_b32 s{sCnt}, 0x40000",
            f"L_spin{u}:", f"buffer_load_dword v{vPoll}, off, {S(sDbg,4)}, s{dw_sgpr} sc1 ;nt", "s_waitcnt vmcnt(0) ;nt",
            f"v_readfirstlane_b32 s{sT0}, v{vPoll} ;nt", f"s_sub_u32 s{sCnt}, s{sCnt}, 1", f"s_cbranch_scc1 L_spin_done{u}",
            f"s_bfe_u32 s{sT0}, s{sT0}, {hx((8 << 16) | shift)}", f"s_cmp_lt_u32 s{sT0}, {target}", f"s_cbranch_scc1 L_spin{u}",
            f"L_spin_done{u}:"]

def setup(e):
    T = vT
    e(["s_cmp_ge_u32 s2, 256", "s_cbranch_scc1 L_end"] + stamp(0))
    e([f"s_load_dwordx2 {S(pX,2)}, s[0:1], 0", f"s_load_dwordx8 {S(pK,8)}, s[0:1], 8",
       f"s_load_dwordx4 {S(pW1,4)}, s[0:1], 48", f"s_load_dwordx8 {S(pW2,8)}, s[0:1], 64",
       f"s_and_b32 s{sXcd}, s2, 7", f"s_lshr_b32 s{sT0}, s2, 3", f"s_and_b32 s{sHl}, s{sT0}, 3", f"s_lshr_b32 s{sB}, s{sT0}, 2",
       f"s_lshl_b32 s{sHead}, s{sXcd}, 2", f"s_add_u32 s{sHead}, s{sHead}, s{sHl}",
       f"s_mul_i32 s{sJ}, s{sXcd}, 3", f"s_add_u32 s{sJ}, s{sJ}, s{sHl}",
       f"s_lshr_b32 s{sSplit}, s{sXcd}, 1", f"s_add_u32 s{sT0}, s{sSplit}, 24",
       f"s_cmp_eq_u32 s{sHl}, 3", f"s_cselect_b32 s{sJ}, s{sT0}, s{sJ}",
       f"s_lshr_b32 s{sT0}, s{sB}, 2", f"s_xor_b32 s{sT0}, s{sT0}, s{sXcd}", f"s_and_b32 s{sT0}, s{sT0}, 1",
       f"s_cmp_eq_u32 s{sHl}, 3", f"s_cselect_b32 s{sInact}, s{sT0}, 0",
       f"s_and_b32 s{sRb}, s{sXcd}, 1", f"s_lshl_b32 s{sRb}, s{sRb}, 3", f"s_add_u32 s{sRb}, s{sRb}, s{sB}", f"s_mov_b32 s{sCb}, s{sHl}",
       f"s_mov_b32 s{sRetry}, 0", f"s_mov_b32 s{sHinc}, 0x10000",
       f"v_lshlrev_b32 v{vZero}, 12, v0",
       "v_lshrrev_b32 v1, 6, v0", "v_and_b32 v0, 63, v0", f"v_readfirstlane_b32 s{sWave}, v1",
       "v_and_b32 v2, 15, v0", "v_lshrrev_b32 v3, 4, v0"])
    e([f"v_and_b32 v{T}, 3, v0", f"v_lshrrev_b32 v{T+1}, 2, v0", f"v_lshl_add_u32 v{T+2}, v1, 2, v{T}",
       f"v_lshlrev_b32 v{T+2}, 10, v{T+2}", f"v_lshl_add_u32 v{T+6}, v{T+1}, 4, v{T+2}"])
    e([f"v_lshlrev_b32 v{T}, 2, v3", f"v_xor_b32 v{T}, v{T}, v2", f"v_lshlrev_b32 v{T}, 4, v{T}",
       f"v_lshl_add_u32 v{T+1}, v1, 4, v3", f"v_lshl_add_u32 v{vDWQ}, v{T+1}, 13, v{T}"])
    for j in range(1, 4): e([f"v_add_u32 v{vDWQ+j}, {j*(4*8192-1024)}, v{vDWQ}"])
    e([f"v_lshrrev_b32 v{T}, 3, v0", f"v_and_b32 v{T+1}, 7, v0", f"v_and_b32 v{T+2}, 2, v{T}",
       f"v_xor_b32 v{T+1}, v{T+1}, v{T+2}",
       f"v_lshl_add_u32 v{T}, v1, 4, v{T}", f"v_mul_u32_u24 v{T}, 3584, v{T}",
       f"v_lshl_add_u32 v{vDW13}, v{T+1}, 4, v{T}",
       f"v_xor_b32 v{T+1}, 4, v{T+1}", f"v_lshl_add_u32 v{vDW13+1}, v{T+1}, 4, v{T}",
       f"v_add_u32 v{vDW13+1}, {8*3584-1024}, v{vDW13+1}"])
    e([f"s_lshl_b32 s{sM0A}, s{sWave}, 12", f"s_lshl_b32 s{sM0B}, s{sWave}, 11",
       f"s_add_u32 s{sM0B}, s{sM0B}, 65536", f"s_add_u32 s{sM0V}, s{sM0A}, 65536",
       f"s_lshl_b32 s{sT0}, s{sB}, 18", f"s_lshl_b32 s{sT1}, s{sHead}, 13", f"s_add_u32 s{sT1}, s{sT1}, s{sT0}",
       "s_waitcnt lgkmcnt(0)"] + stamp(1))
    e(srd(sK, pX, f"s{sT1}", 8192))
    for i in range(4): e([f"buffer_load_dwordx4 {V(64+4*i,4)}, v{T+6}, {S(sK,4)}, 0 offen{off(256*i)}"], "x")
    e(srd(sXN, pWS, f"s{sT0}", 262144))
    e([f"s_lshl_b32 s{sT0}, s{sHead}, 8"] + srd(sWQ, pWQ, f"s{sT0}", 4194304) + [f"s_sub_u32 s{sWQ+2}, s{sWQ+2}, s{sT0}"])
    e([f"s_lshl_b32 s{sT0}, s{sJ}, 7"] + srd(sW1, pW1, f"s{sT0}", 1835008) + srd(sW3, pW3, f"s{sT0}", 1835008))
    e([f"s_sub_u32 s{sW1+2}, s{sW1+2}, s{sT0}", f"s_cmp_eq_u32 s{sInact}, 1", f"s_cselect_b32 s{sW1+2}, 0, s{sW1+2}", f"s_mov_b32 s{sW3+2}, s{sW1+2}"])
    e(flat(dma_w(0)), ("it", 0)); e(flat(dma_w(1)), ("it", 1))
    e(srd(sDbg, pDbg, None, 256))
    e([f"s_lshr_b32 s{sT0}, s{sHead}, 1", f"s_lshl_b32 s{sT0}, s{sT0}, 14", f"s_and_b32 s{sT1}, s{sHead}, 1", f"s_lshl_b32 s{sT1}, s{sT1}, 8",
       f"s_add_u32 s{sSoff2}, s{sT0}, s{sT1}",
       f"v_and_b32 v{T}, 7, v0", f"v_lshlrev_b32 v{T}, 4, v{T}", f"v_lshrrev_b32 v{T+1}, 3, v0", f"v_lshl_add_u32 v{T}, v{T+1}, 9, v{T}",
       f"v_lshl_add_u32 v{T+7}, v1, 7, v{T}"])
    e([f"s_cmp_ge_u32 s{sWave}, 2", "s_cbranch_scc1 L_ln_done"])
    X, F = 64, 96
    e([f"s_mov_b32 s{sT2}, 0xffff0000"])
    n0 = e.need("x")
    for i in range(4):
        e([f"s_waitcnt vmcnt({n0 + 3 - i})"])
        for j in range(4):
            r = 4*i + j
            e([f"v_lshlrev_b32 v{F+2*r}, 16, v{X+r}", f"v_and_b32 v{F+2*r+1}, s{sT2}, v{X+r}"])
    M, Vr, U = 80, 84, 88
    e([f"v_pk_add_f32 {V(M,2)}, {V(F,2)}, {V(F+2,2)}", f"v_pk_add_f32 {V(M+2,2)}, {V(F+4,2)}, {V(F+6,2)}"])
    for p in range(4, 16): e([f"v_pk_add_f32 {V(M+2*(p&1),2)}, {V(M+2*(p&1),2)}, {V(F+2*p,2)}"])
    def red(r):
        o = [f"v_pk_add_f32 {V(r,2)}, {V(r,2)}, {V(r+2,2)}", f"v_add_f32 v{r}, v{r}, v{r+1}"]
        for sh in (4, 8): o += ["s_nop 1", f"v_add_f32_dpp v{r}, v{r}, v{r} row_ror:{sh} row_mask:0xf bank_mask:0xf"]
        for sw in ("v_permlane16_swap_b32", "v_permlane32_swap_b32"):
            o += [f"v_mov_b32 v{r+1}, v{r}", "s_nop 1", f"{sw} v{r}, v{r+1}", f"v_add_f32 v{r}, v{r}, v{r+1}"]
        return o + [f"v_mul_f32 v{r}, {hx(f2u(1/512.))}, v{r}"]
    e(red(M) + [f"v_mov_b32 v{M+1}, v{M}"] + [f"v_mov_b32 v{Vr+i}, 0" for i in range(4)])
    for p in range(16):
        u = U + 2*(p & 1)
        e([f"v_pk_add_f32 {V(u,2)}, {V(F+2*p,2)}, {V(M,2)} neg_lo:[0,1] neg_hi:[0,1]", f"v_pk_fma_f32 {V(Vr+2*(p&1),2)}, {V(u,2)}, {V(u,2)}, {V(Vr+2*(p&1),2)}"])
    e(red(Vr))
    e([f"v_cvt_pk_bf16_f32 v{M}, v{M}, v{Vr}", f"v_and_b32 v{Vr}, s{sT2}, v{M}", f"v_lshlrev_b32 v{M}, 16, v{M}",
       f"v_add_f32 v{Vr}, {hx(f2u(1e-5))}, v{Vr}", f"v_cvt_pk_bf16_f32 v{Vr}, v{Vr}, v{Vr}", f"v_and_b32 v{Vr}, s{sT2}, v{Vr}",
       f"v_sqrt_f32 v{Vr}, v{Vr}", f"v_mov_b32 v{M+1}, v{M}", f"v_cvt_pk_bf16_f32 v{Vr}, v{Vr}, v{Vr}", f"v_and_b32 v{Vr}, s{sT2}, v{Vr}",
       f"v_rcp_f32 v{Vr}, v{Vr}", "s_nop 0", f"v_mov_b32 v{Vr+1}, v{Vr}"])
    for p in range(16):
        a = F + 2*p
        e([f"v_pk_add_f32 {V(a,2)}, {V(a,2)}, {V(M,2)} neg_lo:[0,1] neg_hi:[0,1]", f"v_cvt_pk_bf16_f32 v{U}, v{a}, v{a+1}",
           f"v_lshlrev_b32 v{a}, 16, v{U}", f"v_and_b32 v{a+1}, s{sT2}, v{U}",
           f"v_pk_mul_f32 {V(a,2)}, {V(a,2)}, {V(Vr,2)}", f"v_cvt_pk_bf16_f32 v{X+p}, v{a}, v{a+1}"])
        if p % 4 == 3:
            e([f"buffer_store_dwordx4 {V(X+p-3,4)}, v{T+7}, {S(sXN,4)}, s{sSoff2} offen sc1", f"s_add_u32 s{sSoff2}, s{sSoff2}, 4096"], "xn")
    e(["L_ln_done:"] + stamp(2))
    setup2(e)
    e(["s_waitcnt vmcnt(0)", "s_barrier"] + stamp(3))
    e([f"s_lshl_b32 s{sT1}, s{sB}, 5"] + signal(sT1, 1 << 24), "sig")
    e(spin(sT1, 24, 32))
    e(["s_barrier"] + stamp(4))

def setup2(e):
    T = vT
    e([f"s_lshl_b32 s{sT0}, s{sHead}, 19"] + srd(sK, pK, f"s{sT0}", 524288) + srd(sV, pV, f"s{sT0}", 524288))
    e([f"s_mul_i32 s{sT0}, s{sB}, {16*57344}", f"s_lshl_b32 s{sT1}, s{sJ}, 11", f"s_add_u32 s{sT0}, s{sT0}, s{sT1}", f"s_add_u32 s{sT0}, s{sT0}, {H_OFF}"])
    e(srd(sH, pWS, f"s{sT0}", 16*57344))
    e([f"s_sub_u32 s{sH+2}, s{sH+2}, s{sT1}", f"s_cmp_eq_u32 s{sInact}, 1", f"s_cselect_b32 s{sH+2}, 0, s{sH+2}"])
    e([f"s_lshl_b32 s{sT0}, s{sB}, 21", f"s_lshl_b32 s{sT1}, s{sHead}, 12", f"s_add_u32 s{sT0}, s{sT0}, s{sT1}", f"s_add_u32 s{sT0}, s{sT0}, {O_OFF}"])
    e(srd(sO, pWS, f"s{sT0}", 2097152) + [f"s_sub_u32 s{sO+2}, s{sO+2}, s{sT1}"])
    e([f"v_lshrrev_b32 v{T}, 2, v2", f"v_and_b32 v{T+1}, 3, v2",
       f"v_lshrrev_b32 v{T+2}, 1, v3", f"v_and_b32 v{T+3}, 1, v3",
       f"v_lshlrev_b32 v{T+4}, 16, v1", f"v_lshl_add_u32 v{T+4}, v{T+2}, 9, v{T+4}", f"v_lshl_add_u32 v{T+4}, v{T}, 7, v{T+4}",
       f"v_lshl_add_u32 v{T+4}, v{T+3}, 6, v{T+4}", f"v_lshl_add_u32 v{vOX}, v{T+1}, 4, v{T+4}"])
    for q in range(1, 4): e([f"v_add_u32 v{vOX+q}, {q*16384}, v{vOX}"])
    e([f"v_lshl_add_u32 v{T+2}, v3, 3, v{T}", f"v_lshlrev_b32 v{T+3}, 8, v{T+2}", f"v_lshl_add_u32 v{T+3}, v{T+1}, 4, v{T+3}"])
    for ds in range(4): e([f"v_xor_b32 v{T+4}, {ds}, v{T}", f"v_lshl_add_u32 v{vAWQ+ds}, v{T+4}, 6, v{T+3}"])
    e([f"v_lshrrev_b32 v{T+4}, 3, v2", f"v_and_b32 v{T+5}, 1, v3", f"v_lshl_add_u32 v{T+4}, v{T+5}, 1, v{T+4}",
       f"v_lshlrev_b32 v{T+3}, 7, v{T+2}", f"v_lshl_add_u32 v{T+3}, v{T+1}, 3, v{T+3}", f"v_add_u32 v{T+3}, 65536, v{T+3}"])
    for nt in range(4): e([f"v_xor_b32 v{T+5}, {nt}, v{T+4}", f"v_lshl_add_u32 v{vAW13+nt}, v{T+5}, 5, v{T+3}"])
    e([f"v_xor_b32 v{T+3}, v2, v3", f"v_lshlrev_b32 v{T+4}, 8, v2"])
    for ds in range(4): e([f"v_xor_b32 v{T+5}, {4*ds}, v{T+3}", f"v_lshl_add_u32 v{vAK+ds}, v{T+5}, 4, v{T+4}"])
    e([f"v_lshl_add_u32 v{T+2}, v3, 2, v{T}", f"v_and_b32 v{T+3}, 7, v{T+2}",
       f"v_lshlrev_b32 v{T+4}, 8, v{T+2}", f"v_lshl_add_u32 v{T+4}, v{T+1}, 3, v{T+4}", f"v_add_u32 v{T+4}, 65536, v{T+4}"])
    for dt in range(8): e([f"v_xor_b32 v{T+5}, {dt}, v{T+3}", f"v_lshl_add_u32 v{vAV+dt}, v{T+5}, 5, v{T+4}"])
    e([f"v_lshlrev_b32 v{T+3}, 12, v1", f"v_lshl_add_u32 v{T+3}, v3, 8, v{T+3}", f"v_xor_b32 v{T+4}, v2, v3"])
    for j in range(4): e([f"v_xor_b32 v{T+5}, {4*j}, v{T+4}", f"v_lshl_add_u32 v{vDK+j}, v{T+5}, 4, v{T+3}"])
    e([f"v_lshlrev_b32 v{T+4}, 1, v3", f"v_xor_b32 v{T+4}, v2, v{T+4}"])
    for j in range(2): e([f"v_xor_b32 v{T+5}, {8*j}, v{T+4}", f"v_lshl_add_u32 v{vDV+j}, v{T+5}, 4, v{T+3}"])
    e([f"s_mul_i32 s{sT0}, s{sWave}, {4*57344}", f"v_lshlrev_b32 v{T+3}, 4, v0", f"v_add_u32 v{vOH}, s{sT0}, v{T+3}",
       f"v_lshl_add_u32 v{vOO}, v1, 19, v{T+3}"])
    for q in range(1, 4): e([f"v_add_u32 v{vOH+q}, {q*57344}, v{vOH}", f"v_add_u32 v{vOO+q}, {q*131072}, v{vOO}"])
    e([f"s_mov_b32 s{sQS}, {hx(f2u(QSCALE))}", f"s_mov_b32 s{sQS+1}, {hx(f2u(QSCALE))}"])

def dma_w(c):
    sl = (c & 3) * 16384
    g = [[f"s_add_u32 m0, s{sM0A}, {sl}", f"s_mov_b32 s{sSoff}, {c*524288}", f"buffer_load_dwordx4 v{vDWQ}, {S(sWQ,4)}, s{sSoff} offen lds"]]
    for j in range(1, 4): g.append([f"buffer_load_dwordx4 v{vDWQ+j}, {S(sWQ,4)}, s{sSoff} offen offset:{1024*j} lds"])
    g.append([f"s_add_u32 m0, s{sM0B}, {sl}", f"s_mov_b32 s{sSoff}, {c*229376}", f"buffer_load_dwordx4 v{vDW13}, {S(sW1,4)}, s{sSoff} offen lds"])
    g.append([f"buffer_load_dwordx4 v{vDW13+1}, {S(sW1,4)}, s{sSoff} offen offset:1024 lds"])
    g.append([f"s_add_u32 m0, s{sM0B}, {sl+8192}", "s_nop 0", f"buffer_load_dwordx4 v{vDW13}, {S(sW3,4)}, s{sSoff} offen lds"])
    g.append([f"buffer_load_dwordx4 v{vDW13+1}, {S(sW3,4)}, s{sSoff} offen offset:1024 lds"])
    return g
def ld_x(c):
    g = []
    for qs in range(4):
        for ks in range(2):
            pre = [f"s_movk_i32 s{sSoff2}, {c*2048}"] if (qs == 0 and ks == 0) else []
            g.append(pre + [f"buffer_load_dwordx4 {A(aX + 32*(c%3) + 8*qs + 4*ks, 4)}, v{vOX+qs}, {S(sXN,4)}, s{sSoff2} offen{off(1024*ks)} sc1"])
    return g
KVM = lambda: ["", " sc1", " nt", " sc0 sc1", " sc0"][cfg.kvmod]
def dma_k(n, soff):
    return [[f"s_add_u32 m0, s{sM0A}, {(n & 3) * 16384}"]] + [[f"buffer_load_dwordx4 v{vDK+j}, {S(sK,4)}, {soff} offen{off(1024*j)}{KVM()} lds"] for j in range(4)]
def dma_v(n, soff):
    return [[f"s_add_u32 m0, s{sM0V}, {(n & 3) * 16384}"]] + [[f"buffer_load_dwordx4 v{vDV+(j&1)}, {S(sV,4)}, {soff} offen{off(1024*j)}{KVM()} lds"] for j in range(4)]
def dma_c(n):
    f = n < 7; c = n if f else n - 7
    return [[f"s_add_u32 m0, s{sM0A}, {SLOT[n % 10] * 16384}", f"s_mov_b32 s{sSoff}, {c*65536}"]] + \
           [[f"buffer_load_dwordx4 v{vDC+j}, {S(sW2 if f else sWO,4)}, s{sSoff} offen{off(1024*j)} lds"] for j in range(4)]
def ld_b(n):
    f = n < 7; c = n if f else n - 7
    k, r = hreg(c) if f else ("a", 16 * (c & 7))
    g = []
    for ql in range(2):
        for ks in range(2):
            pre = [f"s_movk_i32 s{sSoff2}, {c*2048}"] if ql + ks == 0 else []
            g.append(pre + [f"buffer_load_dwordx4 {R(k, r + 8*ql + 4*ks, 4)}, v{(vBH if f else vBO)+ql}, {S(sHr if f else sOr,4)}, s{sSoff2} offen{off(1024*ks)} sc1"])
    return g
def rd_w(gb):
    c, nt = gb >> 4, gb & 15
    sl = (c & 3) * 16384; buf = aW + 8 * (gb % 3); o = []
    for ks in range(2):
        for hf in range(2):
            d = A(buf + 4*ks + 2*hf, 2)
            if nt < 8: o.append(f"ds_read_b64_tr_b16 {d}, v{vAWQ + (nt>>1)} offset:{sl + ks*8192 + hf*1024 + 8*(nt&1)}")
            else: o.append(f"ds_read_b64_tr_b16 {d}, v{vAW13 + (nt&3)} offset:{sl + ((nt-8)>>2)*8192 + ks*4096 + hf*512}")
    return o

def phaseA(e):
    e(flat(ld_x(0)), ("it", 0)); e(flat(ld_x(1)), ("it", 1))
    e(rd_w(0) + rd_w(1) + [f"s_waitcnt vmcnt({e.need(('it', 0))}) lgkmcnt(4)"] + stamp(5))
    for c in range(8):
        it = c + 2
        if it < 8: G = dma_w(it) + ld_x(it)
        elif it == 8:
            g = dma_k(0, "0"); G = [g[0] + ["s_nop 0"] + g[1]] + g[2:]
        else:
            g = dma_k(1, f"s{sTile}"); G = [[f"s_movk_i32 s{sTile}, 16384"] + g[0] + [f"s_movk_i32 s{sTile+1}, 0"] + g[1]] + g[2:]
            g = dma_v(1, "0"); G += [g[0] + ["s_nop 0"] + g[1]] + g[2:]
        for nt in range(16):
            gb = 16*c + nt
            rds = rd_w(gb + 2) if gb + 2 < 128 else []
            k = 0
            for qs in range(4):
                d = V(vAccQ + 16*nt + 4*qs, 4) if nt < 8 else A(aAccF + 16*(nt-8) + 4*qs, 4)
                for kk in range(2):
                    ks = kk if qs % 2 == 0 else 1 - kk
                    e([mfma(d, A(aW + 8*(gb%3) + 4*ks, 4), A(aX + 32*(c%3) + 8*qs + 4*ks, 4), "0" if (c == 0 and kk == 0) else d)])
                    if k < 4 and rds: e([rds[k]])
                    if k == 5 and nt < len(G): e(G[nt], ("it", it))
                    if k == 7:
                        if nt == 13 and c < 7: e([f"s_waitcnt vmcnt({e.need(('it', c+1))}) lgkmcnt(4)", "s_barrier"])
                        elif gb + 2 < 128: e(["s_waitcnt lgkmcnt(4)"])
                        elif gb + 1 < 128: e(["s_waitcnt lgkmcnt(0)"])
                    k += 1
    e(stamp(6))
    e([f"s_waitcnt vmcnt({e.need(('it', 8))})", "s_barrier"])
    e([f"ds_read_b128 {A(aK + 4*ds, 4)}, v{vAK+ds}" for ds in range(4)])
    for ds in range(4):
        for qs in range(4):
            for t in range(2):
                r = vAccQ + 16*(2*ds+t) + 4*qs
                e([f"v_pk_mul_f32 {V(r,2)}, {V(r,2)}, {S(sQS,2)}", f"v_pk_mul_f32 {V(r+2,2)}, {V(r+2,2)}, {S(sQS,2)}"])
            for t in range(2):
                r = vAccQ + 16*(2*ds+t) + 4*qs; q = vQ + 16*qs + 4*ds + 2*t
                e([f"v_cvt_pk_bf16_f32 v{q}, v{r}, v{r+1}", f"v_cvt_pk_bf16_f32 v{q+1}, v{r+2}, v{r+3}"])
    e(["s_waitcnt lgkmcnt(0)"])
    for qs in range(4):
        d = V(vS + 4*qs, 4)
        for ds in range(4): e([mfma(d, A(aK + 4*ds, 4), V(vQ + 16*qs + 4*ds, 4), "0" if ds == 0 else d)])
    e([f"s_mov_b32 s{sT0}, {hx(f2u(-LOG2E))}"])
    for qs in range(4):
        for pr in range(2):
            dst = vP + 8*qs + 4*pr
            G_, U_, E_ = vP + 32, vP + 40, vP + 48
            for t in range(2):
                for r in range(4):
                    e([f"v_accvgpr_read_b32 v{G_+4*t+r}, a{aAccF + 16*(2*pr+t) + 4*qs + r}",
                       f"v_accvgpr_read_b32 v{U_+4*t+r}, a{aAccF + 64 + 16*(2*pr+t) + 4*qs + r}"])
            for x in range(8): e([f"v_mul_f32 v{E_+x}, s{sT0}, v{G_+x}"])
            for x in range(8): e([f"v_exp_f32 v{E_+x}, v{E_+x}"])
            for x in range(0, 8, 2): e([f"v_pk_mul_f32 {V(G_+x,2)}, {V(G_+x,2)}, {V(U_+x,2)}"])
            for x in range(8): e([f"v_add_f32 v{E_+x}, 1.0, v{E_+x}"])
            for x in range(8): e([f"v_rcp_f32 v{E_+x}, v{E_+x}"])
            e(["s_nop 0"])
            for x in range(0, 8, 2): e([f"v_pk_mul_f32 {V(G_+x,2)}, {V(G_+x,2)}, {V(E_+x,2)}"])
            for x in range(0, 8, 2): e([f"v_cvt_pk_bf16_f32 v{dst+x//2}, v{G_+x}, v{G_+x+1}"])
            e([f"buffer_store_dwordx4 {V(dst,4)}, v{vOH+qs}, {S(sH,4)}, 0 offen{off(1024*pr)} sc1"], "h")
    setupC(e)
    T = vT
    for qs in range(4):
        s = vS + 4*qs
        e([f"v_max3_f32 v{T+qs}, v{s}, v{s+1}, v{s+2}", f"v_max_f32 v{T+qs}, v{T+qs}, v{s+3}"])
    for r in range(4): e([f"v_mov_b32 v{vOnes+r}, 0x3f803f80"])
    e([f"v_and_b32 v{T+4}, 1, v0", f"v_mul_u32_u24 v{T+4}, 0xaaaa, v{T+4}", f"v_add_u32 v{vIdx}, 0x4444, v{T+4}"])

def setupC(e):
    T = vT
    e([f"v_lshlrev_b32 v{vZero}, 6, v1", f"v_add_u32 v{vZero}, v{vZero}, v0", f"v_lshlrev_b32 v{vZero}, 12, v{vZero}"])
    e([f"s_lshl_b32 s{sT0}, s{sCb}, 8", f"s_mul_i32 s{sT1}, s{sSplit}, {448*1024}", f"s_add_u32 s{sT1}, s{sT1}, s{sT0}"])
    e(srd(sW2, pW2, f"s{sT1}", 1835008) + [f"s_sub_u32 s{sW2+2}, s{sW2+2}, s{sT1}"])
    e([f"s_lshl_b32 s{sT1}, s{sSplit}, 20", f"s_add_u32 s{sT1}, s{sT1}, s{sT0}"])
    e(srd(sWO, pWO, f"s{sT1}", 4194304) + [f"s_sub_u32 s{sWO+2}, s{sWO+2}, s{sT1}"])
    e([f"s_mul_i32 s{sT0}, s{sRb}, {8*57344}", f"s_mul_i32 s{sT1}, s{sSplit}, 14336", f"s_add_u32 s{sT0}, s{sT0}, s{sT1}", f"s_add_u32 s{sT0}, s{sT0}, {H_OFF}"])
    e(srd(sHr, pWS, f"s{sT0}", 8*57344))
    e([f"s_lshl_b32 s{sT0}, s{sRb}, 20", f"s_lshl_b32 s{sT1}, s{sSplit}, 15", f"s_add_u32 s{sT0}, s{sT0}, s{sT1}", f"s_add_u32 s{sT0}, s{sT0}, {O_OFF}"])
    e(srd(sOr, pWS, f"s{sT0}", 1048576))
    e([f"v_lshl_add_u32 v{T}, v1, 4, v3", f"v_lshlrev_b32 v{T}, 10, v{T}", f"v_lshlrev_b32 v{T+1}, 1, v3", f"v_xor_b32 v{T+1}, v2, v{T+1}"])
    for j in range(4):
        e([f"v_xor_b32 v{T+2}, {8*(j&1)}, v{T+1}", f"v_lshl_add_u32 v{vDC+j}, v{T+2}, 4, v{T}"] + ([f"v_add_u32 v{vDC+j}, {3072*j}, v{vDC+j}"] if j else []))
    for n in (1, 2): e(flat(dma_c(n)), ("c", n))
    e([f"s_lshr_b32 s{sT0}, s{sSplit}, 1", f"s_lshl_b32 s{sT0}, s{sT0}, 2", f"s_add_u32 s{sT0}, s{sT0}, s{sWave}", f"s_xor_b32 s{sT1}, s{sT0}, 4",
       f"v_lshlrev_b32 v{T}, 4, v0"])
    for ql, s in enumerate((sT0, sT1)):
        e([f"s_mul_i32 s{sT2}, s{s}, 57344", f"v_add_u32 v{vBH+ql}, s{sT2}, v{T}", f"s_lshl_b32 s{sT2}, s{s}, 17", f"v_add_u32 v{vBO+ql}, s{sT2}, v{T}"])
    e([f"s_and_b32 s{sT0}, s{sSplit}, 1", f"s_lshl_b32 s{sT0}, s{sT0}, 7"])
    for nt in range(8):
        e([f"v_xor_b32 v{vAC+8+nt}, s{sT0}, v{vAV+nt}", f"v_subrev_u32 v{vAC+nt}, 65536, v{vAC+8+nt}", f"v_add_u32 v{vAC+16+nt}, 65536, v{vAC+8+nt}"])
    e([f"s_lshl_b32 s{sT0}, s{sB}, 17", f"v_lshrrev_b32 v{T}, 1, v0", f"v_lshl_add_u32 v{T}, v1, 5, v{T}", f"v_lshlrev_b32 v{T}, 10, v{T}",
       f"v_and_b32 v{T+1}, 1, v0", f"v_lshl_add_u32 v{T}, v{T+1}, 7, v{T}", f"v_add_u32 v{vTouch}, s{sT0}, v{T}"])

def max_to_c(e):
    T = vT
    for sw in ("v_permlane32_swap_b32", "v_permlane16_swap_b32"):
        for qs in range(4): e([f"v_mov_b32 v{T+4+qs}, v{T+qs}"])
        e(["s_nop 0"])
        for qs in range(4): e([f"{sw} v{T+qs}, v{T+4+qs}"])
        for qs in range(4): e([f"v_max_f32 v{T+qs}, v{T+qs}, v{T+4+qs}"])
    for qs in range(4):
        for r in range(4): e([f"v_sub_f32 v{vC+4*qs+r}, 0, v{T+qs}"])
    for r in range(16): e([f"v_accvgpr_write_b32 a{aL+r}, 0"])
    e([f"ds_read_b128 {A(aK + 16, 4)}, v{vAK} offset:4096"])

def attn_iter(e, i):
    qk = i + 1 < NT; pv = i >= 0
    Pn = vP + 32 * ((i + 1) & 1); Pc = vP + 32 * (i & 1)
    n = i + 3
    free = [(b, g) for b in range(16) for g in ((5, 7) if b % 2 == 0 else (1, 5, 7)) if (b, g) != (11, 1)]
    extra = {}
    def put(groups, tag, slots):
        assert len(groups) <= len(slots), (i, len(groups), len(slots))
        for g, sl in zip(groups, slots): extra.setdefault(sl, []).append((g, tag))
    kslots = [(0, 5), (0, 7), (1, 5), (2, 5), (3, 5), (4, 5)]
    vslots = [(4, 7), (5, 1), (5, 5), (6, 5), (7, 5), (8, 5)]
    if n < NT: put([[f"s_add_u32 s{sTile}, s{sTile}, 16384"]] + dma_k(n, f"s{sTile}"), ("it", 8 + n), kslots)
    if n - 1 < NT: put([[f"s_add_u32 s{sTile+1}, s{sTile+1}, 16384"]] + dma_v(n, f"s{sTile+1}"), ("it", 8 + n), vslots)
    if i == 0:
        put([[f"s_lshl_b32 s{sT1}, s{sB}, 5"], signal(sT1, f"s{sHinc}")], "sig", [(11, 5), (11, 7)])
    if i == 29:
        put([[f"s_lshr_b32 s{sT1}, s{sRb}, 1", f"s_lshl_b32 s{sT1}, s{sT1}, 5", f"buffer_load_dword v{vPoll}, off, {S(sDbg,4)}, s{sT1} sc1"]], "poll", [(0, 5)])
        put(dma_c(0), ("c", 0), kslots[1:])
        put([[f"buffer_load_dword v{vT}, v{vTouch}, {S(sWO,4)}, 0 offen"]], "touch", [(9, 5)])
        put([[f"v_readfirstlane_b32 s{sT0}, v{vPoll}"], [f"s_bfe_u32 s{sT0}, s{sT0}, {hx((8 << 16) | 16)}", f"s_cmp_lt_u32 s{sT0}, 32", "s_cbranch_scc1 L_hwait", "L_hok:"]],
            None, [(11, 5), (11, 7)])
        put(ld_b(0), ("b", 0), [(12, 5), (12, 7), (13, 1), (13, 5)]); put(ld_b(1), ("b", 1), [(13, 7), (14, 5), (14, 7), (15, 1)])
    if i == 30:
        put(dma_c(3), ("c", 3), kslots[1:]); put(dma_c(4), ("c", 4), vslots[1:])
        put(ld_b(2), ("b", 2), [(9, 1), (9, 5), (9, 7), (10, 5)]); put(ld_b(3), ("b", 3), [(12, 5), (12, 7), (13, 1), (13, 5)])
        put(ld_b(6), ("b", 6), [(13, 7), (14, 5), (14, 7), (15, 1)])
    if i == 31:
        put(dma_c(5), ("c", 5), kslots[1:]); put(dma_c(6), ("c", 6), vslots[1:])
        put(ld_b(4), ("b", 4), [(9, 1), (9, 5), (9, 7), (10, 5)]); put(ld_b(5), ("b", 5), [(11, 5), (11, 7), (12, 5), (12, 7)])
    for b in range(16):
        kt, qs = b >> 2, b & 3
        M = []
        if qk:
            d = V(vS + 4*(b & 3), 4)
            order = range(4) if qs % 2 == 0 else range(3, -1, -1)
            for m, ds in enumerate(order):
                M.append(mfma(d, A(aK + 16*(kt & 1) + 4*ds, 4), V(vQ + 16*qs + 4*ds, 4), V(vC + 4*qs, 4) if m == 0 else d))
        else: M += [None] * 4
        if pv:
            dt = b >> 1
            for h in range(2):
                q2 = 2*(b & 1) + h
                d = A(aO + 16*dt + 4*q2, 4)
                for kk in range(2):
                    ks = kk if h == 0 else 1 - kk
                    M.append(mfma(d, A(aV + 8*(dt & 1) + 4*ks, 4), V(Pc + 8*q2 + 4*ks, 4), "0" if (i == 0 and kk == 0) else d))
        else: M += [None] * 4
        G = [[] for _ in range(8)]
        if b > 0: sm, pb, Pd = qk, b - 1, Pn
        else: sm, pb, Pd = pv, 15, Pc
        if sm:
            s = vS + 4*(pb & 3); pk, pq = pb >> 2, pb & 3
            pd = Pd + 8*pq + 4*(pk >> 1) + 2*(pk & 1)
            for r in range(4): G[2*r].append(f"v_exp_f32 v{s+r}, v{s+r}")
        if b % 2 == 0: G[1].append("s_waitcnt lgkmcnt(1)")
        if b == 11 and qk: G[1].append("@bar")
        dtn = (b >> 1) + 1; vt = i
        if dtn == 8: dtn, vt = 0, i + 1
        if 0 <= vt < NT:
            ks = b & 1; sl = ((vt + 1) & 3) * 16384
            for hf in range(2):
                G[1 + 2*hf].append(f"ds_read_b64_tr_b16 {A(aV + 8*(dtn & 1) + 4*ks + 2*hf, 2)}, v{vAV+dtn} offset:{sl + ks*8192 + hf*4096}")
        if sm: G[3].append(f"v_cvt_pk_bf16_f32 v{pd}, v{s}, v{s+1}")
        u = b + 1; ktn, j, ktile = (u >> 2) + 1, u & 3, i + 1
        if ktn >= 4: ktn, ktile = ktn - 4, i + 2
        if ktile < NT:
            G[5].append(f"ds_read_b128 {A(aK + 16*(ktn & 1) + 4*j, 4)}, v{vAK+j} offset:{(ktile & 3)*16384 + ktn*4096}")
        elif b % 2 == 1: G[7].append("s_waitcnt lgkmcnt(0)")
        if sm: G[7].append(f"v_cvt_pk_bf16_f32 v{pd+1}, v{s+2}, v{s+3}")
        for m in range(8):
            if M[m] is not None: e([M[m]])
            elif m in (3, 7) and sm: e(["s_nop 0"])
            for x in G[m]:
                if x == "@bar":
                    tags = [("it", 8 + i + 2)] + (["h"] if i == 0 else []) + (["poll"] if i == 29 else [])
                    e([f"s_waitcnt vmcnt({e.need(*tags)})", "s_barrier"])
                else: e([x])
            for g, tag in extra.get((b, m), []):
                e([x for x in g if not (cfg.nodma and isvm(x) and 0 < i < 29)], tag)
        sb = (2, 6, 10, 14) if qk else (1, 2, 3, 4)
        if pv and b in sb:
            q2 = sb.index(b)
            e([f"v_smfmac_f32_16x16x64_bf16 {A(aL + 4*q2, 4)}, {V(vOnes,4)}, {V(Pc + 8*q2, 8)}, v{vIdx}"])
        if not pv: e(["s_nop 1" if b else "s_nop 6"])
        if i == NT - 1 and b == 8: vote(e)

def vote(e):
    T = vT
    e([f"s_waitcnt vmcnt({e.need('touch')})"])
    for qs in range(4): e([f"v_accvgpr_read_b32 v{T+2*qs}, a{aL+4*qs}", f"v_accvgpr_read_b32 v{T+2*qs+1}, a{aL+4*qs+1}"])
    for qs in range(4): e([f"v_add_f32 v{T+2*qs}, v{T+2*qs}, v{T+2*qs+1}"])
    e([f"v_add_f32 v{T+1}, v{T}, v{T+2}", f"v_add_f32 v{T+3}, v{T+4}, v{T+6}", f"v_add_f32 v{T+1}, v{T+1}, v{T+3}",
       f"v_cmp_nge_f32 vcc, {hx(f2u(2.0**40 if not cfg.forcefb else 2.0))}, v{T+1}"])
    for qs in range(4): e([f"v_rcp_f32 v{T+2*qs}, v{T+2*qs}"])
    e([f"s_or_b32 s{sT0}, vcc_lo, vcc_hi", f"v_lshlrev_b32 v{T+1}, 2, v1", f"v_mov_b32 v{T+3}, s{sT0}", f"ds_write_b32 v{T+1}, v{T+3} offset:{VOTE}"])

def attn_epilogue(e):
    T = vT
    e([f"s_waitcnt vmcnt({e.need(('c', 0), ('c', 1), ('b', 2))}) lgkmcnt(0)", "s_barrier"])
    e([f"v_mov_b32 v{T+1}, 0", f"ds_read_b128 {V(vS,4)}, v{T+1} offset:{VOTE}"])
    for n in (7, 8): e(flat(dma_c(n)), ("c", n))
    for qs in range(4): e([f"v_mov_b32 v{T+2*qs+1}, v{T+2*qs}"])
    e(["s_waitcnt lgkmcnt(0)", f"v_or_b32 v{vS}, v{vS}, v{vS+1}", f"v_or3_b32 v{vS}, v{vS}, v{vS+2}, v{vS+3}", "s_nop 0",
       f"v_readfirstlane_b32 s{sT0}, v{vS}", "s_nop 0", f"s_cmp_lg_u32 s{sT0}, 0", "s_cbranch_scc1 L_fallback", "L_nofb:"])
    e(flat([rd_c(gb) for gb in range(3)]))
    n = 0
    for j in range(4):
        for qs in range(4):
            E = vP + 8*(n % 4); D = vP + 32 + 4*(n % 8); n += 1
            for t in range(2):
                for r in range(4): e([f"v_accvgpr_read_b32 v{E+4*t+r}, a{aO + 16*(2*j+t) + 4*qs + r}"])
            for x in range(0, 8, 2): e([f"v_pk_mul_f32 {V(E+x,2)}, {V(E+x,2)}, {V(T+2*qs,2)}"])
            for x in range(0, 8, 2): e([f"v_cvt_pk_bf16_f32 v{D+x//2}, v{E+x}, v{E+x+1}"])
            e([f"buffer_store_dwordx4 {V(D,4)}, v{vOO+qs}, {S(sO,4)}, 0 offen{off(1024*j)} sc1"], "o")

NC = 23
def rd_c(gb):
    n, nt = gb >> 3, gb & 7
    sl = SLOT[n % 10]; o = []
    for ks in range(2):
        for hf in range(2):
            o.append(f"ds_read_b64_tr_b16 {V(vFr + 8*(gb & 3) + 4*ks + 2*hf, 2)}, v{vAC + 8*(sl >> 2) + nt} offset:{(sl & 3)*16384 + ks*8192 + hf*4096}")
    return o
def part_stores(e, acc, m, tag):
    for p in (1, 2, 3):
        e([f"s_xor_b32 s{sT0}, s{sSplit}, {p}", f"s_mul_i32 s{sT0}, s{sT0}, {3*32768}", f"s_add_u32 s{sT0}, s{sT0}, {(p-1)*32768 + m*16384}"])
        for x in range(4):
            e([f"buffer_store_dwordx4 {V(acc + 32*(p >> 1) + 16*(p & 1) + 4*x, 4)}, v{vPW}, {S(sPw,4)}, s{sT0} offen{off(1024*x)} sc1"], tag)

def phaseC(e):
    T = vT
    bars = [2, 4, 6, 8, 10, 12, 14, 16, 18, 20, 22]
    issued = 9
    e([f"s_waitcnt vmcnt({e.need(('b', 0), ('b', 1), ('b', 2), ('b', 3), ('b', 4), ('b', 5), ('b', 6))}) lgkmcnt(8)"] + stamp(11))
    pend = []
    late = [[f"s_lshl_b32 s{sT0}, s{sRb}, 2", f"s_add_u32 s{sT0}, s{sT0}, s{sCb}"], [f"s_mul_i32 s{sT0}, s{sT0}, {4*3*32768}", f"s_add_u32 s{sT0}, s{sT0}, {P_OFF}"]]
    x = srd(sPw, pWS, f"s{sT0}", 4*3*32768); late += [x[:2], x[2:]]
    late += [[f"v_lshlrev_b32 v{vPW}, 4, v0"], [f"v_lshl_add_u32 v{vPW}, v1, 12, v{vPW}"]]
    late += [[f"s_lshl_b32 s{sT0}, s{sRb}, 1", f"s_lshr_b32 s{sT1}, s{sSplit}, 1"], [f"s_add_u32 s{sT0}, s{sT0}, s{sT1}", f"s_lshl_b32 s{sT0}, s{sT0}, 16"],
             [f"s_lshl_b32 s{sT1}, s{sCb}, 1", f"s_and_b32 s{sT2}, s{sSplit}, 1"], [f"s_add_u32 s{sT1}, s{sT1}, s{sT2}", f"s_lshl_b32 s{sT1}, s{sT1}, 7"],
             [f"s_add_u32 s{sT0}, s{sT0}, s{sT1}"]]
    x = srd(sX, pX, f"s{sT0}", 2097152); late += [x[:2], x[2:]]
    x = srd(sOut, pOut, f"s{sT0}", 2097152); late += [x[:2], x[2:]]
    late += [[f"s_sub_u32 s{sX+2}, s{sX+2}, s{sT0}", f"s_mov_b32 s{sOut+2}, s{sX+2}"],
             [f"v_lshl_add_u32 v{vXo}, v1, 4, v2"], [f"v_lshlrev_b32 v{vXo}, 10, v{vXo}"], [f"v_lshl_add_u32 v{vXo}, v3, 3, v{vXo}"]]
    pend += [(g, None) for g in late]
    for n in range(NC):
        f = n < 7; c = n if f else n - 7
        acc = vAccF if f else vAccS
        bk, br = hreg(c) if f else ("a", 16 * (c & 7))
        if n == 7:
            assert not pend
            e(stamp(12))
            e(["s_nop 4"]); part_stores(e, vAccF, 0, "pf")
            e([f"s_lshr_b32 s{sT1}, s{sRb}, 1", f"s_lshl_b32 s{sT1}, s{sT1}, 2", f"s_add_u32 s{sT1}, s{sT1}, s{sSplit}", f"s_lshl_b32 s{sT1}, s{sT1}, 3"])
            e(spin(sT1, 8, 8)); e([f"s_waitcnt vmcnt({e.need(('c', 12))})", "s_barrier"] + stamp(13))
            for m in range(7, 15): e(flat(ld_b(m)), ("b", m))
            e([f"s_waitcnt vmcnt({e.need(('b', 7))})"] + stamp(14))
        if n >= 8 and n + 7 < NC: pend += [(g, ("b", n + 7)) for g in ld_b(n + 7)]
        if n == NC - 2: pend += [([f"buffer_load_dwordx2 {V(T+2*x,2)}, v{vXo}, {S(sX,4)}, 0 offen{off(32*x)}"], "xr") for x in range(4)]
        for nt in range(8):
            gb = 8*n + nt
            if nt == 5 and n + 1 in bars:
                b = n + 1
                tags = [("c", m) for m in (b, b + 1) if m < NC] + (["o"] if b == 4 else [])
                e([f"s_waitcnt vmcnt({e.need(*tags)})", "s_barrier"])
                if b == 4:
                    e([f"s_lshl_b32 s{sT1}, s{sB}, 2", f"s_add_u32 s{sT1}, s{sT1}, s{sSplit}", f"s_lshl_b32 s{sT1}, s{sT1}, 3"] + signal(sT1, 1 << 8), "sig")
                while issued < NC and issued - 10 <= b - 2:
                    pend += [(g, ("c", issued)) for g in dma_c(issued)]; issued += 1
            rds = rd_c(gb + 3) if gb + 3 < 8*NC else []
            k = 0
            for ql in range(2):
                d = V(acc + 32*ql + 4*nt, 4)
                for kk in range(2):
                    ks = kk if ql == 0 else 1 - kk
                    e([mfma(d, V(vFr + 8*(gb & 3) + 4*ks, 4), R(bk, br + 8*ql + 4*ks, 4), "0" if (c == 0 and kk == 0) else d)])
                    if rds: e([rds[k]])
                    if k in (0, 2) and pend:
                        g, tag = pend.pop(0); e(g, tag)
                    if k == 3:
                        left = 8*NC - 1 - gb
                        w = f"lgkmcnt({4*min(2, max(0, left - 1))})" if left > 0 else ""
                        if nt == 7 and 7 <= n < NC - 1: w = f"vmcnt({e.need(('b', n + 1))}) " + w
                        if w: e([f"s_waitcnt {w}"])
                    k += 1
    assert not pend and issued == NC
    e(stamp(15))
    e(["s_nop 4"]); part_stores(e, vAccS, 1, "ps")
    e([f"s_lshl_b32 s{sT1}, s{sRb}, 2", f"s_add_u32 s{sT1}, s{sT1}, s{sCb}", f"s_lshl_b32 s{sT1}, s{sT1}, 2",
       "s_waitcnt vmcnt(0)", "s_barrier"] + stamp(16))
    e(signal(sT1, 1), "sig")
    e(spin(sT1, 0, 4)); e(["s_barrier"] + stamp(17))
    e([f"s_mul_i32 s{sT0}, s{sSplit}, {3*32768}"])
    for m, acc in enumerate((vAccF, vAccS)):
        for p in range(3):
            e([f"s_add_u32 s{sT1}, s{sT0}, {p*32768 + m*16384}"])
            for x in range(4): e([f"buffer_load_dwordx4 {V(acc + 16 + 16*p + 4*x, 4)}, v{vPW}, {S(sPw,4)}, s{sT1} offen{off(1024*x)} sc1"], ("g", m))
    F_, S_, E_, X_ = vAccF, vAccS, 192, 208
    e([f"s_mov_b32 s{sT0}, {hx(f2u(-LOG2E))}", f"s_mov_b32 s{sT1}, 0xffff0000"])
    for p in range(8): e([f"v_lshlrev_b32 v{X_+2*p}, 16, v{T+p}", f"v_and_b32 v{X_+2*p+1}, s{sT1}, v{T+p}"])
    def addup(b):
        for x in range(0, 16, 2):
            e([f"v_pk_add_f32 {V(b+x,2)}, {V(b+x,2)}, {V(b+16+x,2)}", f"v_pk_add_f32 {V(b+32+x,2)}, {V(b+32+x,2)}, {V(b+48+x,2)}"])
        for x in range(0, 16, 2): e([f"v_pk_add_f32 {V(b+x,2)}, {V(b+x,2)}, {V(b+32+x,2)}"])
    e([f"s_waitcnt vmcnt({e.need(('g', 0))})"]); addup(F_)
    for x in range(16): e([f"v_mul_f32 v{E_+x}, s{sT0}, v{F_+x}"])
    for x in range(16): e([f"v_exp_f32 v{E_+x}, v{E_+x}"])
    for x in range(16): e([f"v_add_f32 v{E_+x}, 1.0, v{E_+x}"])
    for x in range(16): e([f"v_rcp_f32 v{E_+x}, v{E_+x}"])
    for x in range(0, 16, 2): e([f"v_pk_mul_f32 {V(F_+x,2)}, {V(F_+x,2)}, {V(E_+x,2)}"])
    e(["s_waitcnt vmcnt(0)"]); addup(S_)
    for x in range(0, 16, 2): e([f"v_pk_fma_f32 {V(X_+x,2)}, {V(F_+x,2)}, {V(S_+x,2)}, {V(X_+x,2)}"])
    for p in range(8): e([f"v_cvt_pk_bf16_f32 v{T+p}, v{X_+2*p}, v{X_+2*p+1}"])
    for x in range(4): e([f"buffer_store_dwordx2 {V(T+2*x,2)}, v{vXo}, {S(sOut,4)}, 0 offen{off(32*x)}"], "out")
    e(stamp(18) + stamp_flush())

def cold_paths():
    L = []
    L += ["L_hwait:", f"s_mov_b32 s{sCnt}, 0x40000", "L_hwait_l:",
          f"buffer_load_dword v{vPoll}, off, {S(sDbg,4)}, s{sT1} sc1", "s_waitcnt vmcnt(0)", f"v_readfirstlane_b32 s{sT0}, v{vPoll}",
          f"s_sub_u32 s{sCnt}, s{sCnt}, 1", "s_cbranch_scc1 L_hok",
          f"s_bfe_u32 s{sT0}, s{sT0}, {hx((8 << 16) | 16)}", f"s_cmp_lt_u32 s{sT0}, 32", "s_cbranch_scc1 L_hwait_l", "s_branch L_hok"]
    T = vT
    F = ["L_fallback:", f"s_cmp_lg_u32 s{sRetry}, 0", "s_cbranch_scc1 L_nofb", f"s_mov_b32 s{sRetry}, 1", f"s_mov_b32 s{sHinc}, 0", f"s_mov_b32 s{sTile}, 0"]
    F += [f"v_mov_b32 v{T+qs}, 0xff800000" for qs in range(4)]
    B = ["s_waitcnt vmcnt(0) lgkmcnt(0)", "s_barrier"]
    g = dma_k(0, f"s{sTile}"); B += g[0] + ["s_nop 0"] + flat(g[1:]) + ["s_waitcnt vmcnt(0)", "s_barrier"]
    for kt in range(4):
        B += [f"ds_read_b128 {A(aK + 4*ds, 4)}, v{vAK+ds} offset:{kt*4096}" for ds in range(4)] + ["s_waitcnt lgkmcnt(0)"]
        for qs in range(4):
            d = V(vS + 4*qs, 4)
            B += [mfma(d, A(aK + 4*ds, 4), V(vQ + 16*qs + 4*ds, 4), "0" if ds == 0 else d) for ds in range(4)]
        B += ["s_nop 7"]
        for qs in range(4):
            s = vS + 4*qs
            B += [f"v_max3_f32 v{T+qs}, v{T+qs}, v{s}, v{s+1}", f"v_max3_f32 v{T+qs}, v{T+qs}, v{s+2}, v{s+3}"]
    B += [f"s_add_u32 s{sTile}, s{sTile}, 16384", f"s_cmp_lt_u32 s{sTile}, {NT*16384}"]
    E = ["s_barrier"]
    g = dma_k(0, "0"); E += g[0] + [f"s_movk_i32 s{sTile}, 16384"] + flat(g[1:])
    g = dma_k(1, f"s{sTile}"); E += g[0] + [f"s_movk_i32 s{sTile+1}, 0"] + flat(g[1:])
    g = dma_v(1, "0"); E += g[0] + ["s_nop 0"] + flat(g[1:])
    E += ["s_waitcnt vmcnt(0)", "s_barrier"]
    E += [f"ds_read_b128 {A(aK + 4*ds, 4)}, v{vAK+ds}" for ds in range(4)] + ["s_waitcnt lgkmcnt(0)"]
    L += F + ["L_fb_loop:"] + B + ["s_cbranch_scc1 L_fb_loop"] + E + ["s_branch L_attn"]
    return L, F + B + B + E

def gen():
    e = Em()
    setup(e); phaseA(e)
    pre = e.take()
    e(["L_attn:"]); max_to_c(e); e(stamp(7))
    attn_iter(e, -1); attn_iter(e, 0); e(stamp(8))
    head = e.take()
    its = {}
    for i in range(1, 29):
        attn_iter(e, i); its[i] = e.take()
    blk = flat([its[i] for i in range(1, 5)])
    for r in range(7): assert flat([its[i] for i in range(1 + 4*r, 5 + 4*r)]) == blk, r
    e(stamp(9))
    for i in range(29, NT): attn_iter(e, i)
    e(stamp(10))
    attn_epilogue(e); phaseC(e)
    tail = e.take()
    cold, fbtrace = cold_paths()
    loopctl = [f"s_sub_u32 s{sLoop}, s{sLoop}, 1", f"s_cmp_lg_u32 s{sLoop}, 0", "s_cbranch_scc1 L_attn_loop"]
    text = pre + head + [f"s_movk_i32 s{sLoop}, 7", "L_attn_loop:"] + blk + loopctl + tail + ["L_end:", "s_endpgm"] + cold
    nt = lambda L: [x for x in L if ";nt" not in x]
    trace = nt(pre + head + blk + loopctl + blk + loopctl + tail)
    k = tail.index("L_nofb:")
    trace2 = nt(tail[k-60:k] + fbtrace + head)
    return text, [trace, trace2]

def main(path):
    hdr = open(f"cdna_kernels/{NAME}.s.ref").read().split("\n")
    hdr = [h for h in hdr if h.startswith(";") and "@launch" not in h]
    kn = NAME + "_kernel"
    text, traces = gen()
    bad = 0
    for t in traces:
        pr = check(t, "k")
        for p in pr[:30]: print(p)
        bad += len(pr)
    out = hdr + ["; @launch grid=(256,1,1) block=(256,1,1) lds=163840", '.amdgcn_target "amdgcn-amd-amdhsa--gfx950"', ".text",
                 f".globl {kn}", ".p2align 8", f".type {kn},@function", f"{kn}:"] + [x.replace(" ;nt", "") for x in text]
    out += ['.section .rodata,"a"', ".p2align 6", f".amdhsa_kernel {kn}", "  .amdhsa_next_free_vgpr 512", "  .amdhsa_next_free_sgpr 100",
            "  .amdhsa_accum_offset 256", "  .amdhsa_group_segment_fixed_size 0", "  .amdhsa_kernarg_size 96",
            "  .amdhsa_user_sgpr_count 2", "  .amdhsa_user_sgpr_kernarg_segment_ptr 1",
            "  .amdhsa_system_sgpr_workgroup_id_x 1", ".end_amdhsa_kernel"]
    open(path, "w").write("\n".join(out) + "\n")
    print("problems:", bad, "lines:", len(out))
if __name__ == "__main__":
    args = [a for a in sys.argv[1:] if not a.startswith("--")]
    for a in sys.argv[1:]:
        if a.startswith("--"):
            kv = a[2:].split("=")
            assert hasattr(cfg, kv[0]), kv
            setattr(cfg, kv[0], int(kv[1]) if len(kv) > 1 else True)
    main(args[0] if args else f"cdna_kernels/{NAME}.s")
```

```python
import sys, struct
sys.path.insert(0, "gen")
from asmlib import *

NAME = "recurrent_scan__mha_block_cached__glu_gated_swiglu__prompt"
XN_OFF = 0
H_OFF = 4 << 20
O_OFF = 16 << 20
P_OFF = 32 << 20
F_OFF = 60 << 20
FX, FH, FO, FP = 32*128, 64*128, 128*128, 256*128
DIAG_OFF = 64 << 20
WS_SIZE = 268435456
def f2u(x): return struct.unpack("<I", struct.pack("<f", x))[0]
def hx(x): return "0x%x" % x
QSCALE = 1.4426950408889634 / (128.0 ** 0.5)
LOG2E = 1.4426950408889634
NT = 32

class Cfg:
    stamps = False
    nodma = False
    kvmod = 0
    forcefb = False
    notouch = False
    opost = 10
    rot = 0
    wstart = 24
    olead = 2
    orate = 10
    x1 = 0
    x2 = 0
cfg = Cfg()

sK, sV, sWQ, sW1, sW3, sXN, sH, sO = 8, 12, 16, 20, 24, 28, 32, 36
sW2, sWO, sHr, sOr = 16, 20, 24, 28
sPw, sX, sOut = 8, 12, 32
sM0A, sM0B, sM0V, sSoff, sSoff2, sCnt, sQS, sTile = 40, 41, 42, 43, 44, 45, 46, 48
sWave, sRetry = 50, 51
pK, pV, pWQ, pWO = 52, 54, 56, 58
pW1, pW3, pW2, pOut, pDbg, pWS = 60, 62, 64, 66, 68, 70
pX = 72
sXcd, sHl, sB, sHead, sJ, sInact, sT0, sT1, sT2 = 74, 75, 76, 77, 78, 79, 80, 81, 82
sSplit, sRh, sCb, sLoop, sTag = 83, 84, 85, 86, 87
sFlag = 88
sColA, sColB, sPf = 100, 101, 47
sRot = 46
sCode, sCodeOff = 4, 3
vAK, vAV = 4, 8
vDK, vDV = 16, 20
vBH = 22
vAWQ, vAW13, vDWQ, vDW13, vOX, vOH = 24, 28, 32, 36, 40, 44
vDC, vBO, vTWo, vTW2, vLane0, vL4, vThr0 = 32, 36, 38, 39, 40, 41, 42
vAC = [list(range(24, 32)), list(range(229, 237)), [44, 45, 46, 47, 237, 238, 239, 43]]
vOO = 48
vT = 52
vPoll = 60
vCode = 61
vP, vQ, vS, vC, vOnes, vIdx = 64, 128, 192, 208, 224, 228
vAD, vDD, vPW, vXo = 4, 16, 20, 21
aO, aL, aK, aV = 0, 128, 144, 176
aX, aW = 128, 224
vAccQ, vAccG, aAccU = 128, 64, 0
vAccF, vAccS, vFr = 128, 64, 192
SLOT = [0, 8, 9, 1, 5, 2, 6, 7, 4, 3]
SLOT += SLOT[:7]
SLOT += [SLOT[7], SLOT[8], SLOT[9], SLOT[11], SLOT[13], SLOT[15]]
VOTE = 3 * 16384
one = lambda xs: [[x] for x in xs]
two = lambda xs: [xs[i:i+2] for i in range(0, len(xs), 2)]
def hreg(c):
    return ("a", 192 + 16*c) if c < 4 else (("a", 144 + 16*(c-4)) if c < 6 else ("v", 240))

def srd(s, plo, off, size):
    if off is None: L = [f"s_mov_b32 s{s}, s{plo}", f"s_mov_b32 s{s+1}, s{plo+1}"]
    else: L = [f"s_add_u32 s{s}, s{plo}, {off}", f"s_addc_u32 s{s+1}, s{plo+1}, 0"]
    return L + [f"s_mov_b32 s{s+2}, {size}", f"s_mov_b32 s{s+3}, 0x20000"]
def mfma(d, a, b, c): return f"v_mfma_f32_16x16x32_bf16 {d}, {a}, {b}, {c}"
def flat(gs): return [x for g in gs for x in g]
def isvm(x): return x.startswith("buffer_")
def off(n): return f" offset:{n}" if n else ""

def stamp(n):
    if not cfg.stamps: return []
    return ["s_memtime s[92:93]", "s_memrealtime s[94:95]", "s_waitcnt lgkmcnt(0)",
            f"v_writelane_b32 v62, s92, {n}", f"v_writelane_b32 v63, s94, {n}"]
def stamp_flush():
    if not cfg.stamps: return []
    L = ["s_waitcnt vmcnt(0)"] + stamp(31)
    L += ["s_lshl_b32 s92, s2, 11", f"s_lshl_b32 s93, s{sWave}, 9", "s_add_u32 s92, s92, s93", f"s_add_u32 s92, s92, {DIAG_OFF}"]
    L += srd(96, pWS, None, WS_SIZE)
    L += ["v_lshlrev_b32 v60, 3, v0", "buffer_store_dwordx2 v[62:63], v60, s[96:99], s92 offen"]
    return L

class Em:
    def __init__(self): self.L = []; self.ops = []
    def __call__(self, xs, tag=None):
        for x in xs:
            self.L.append(x)
            if isvm(x) and ";nt" not in x and tag != "sig": self.ops.append(tag)
    def need(self, *tags):
        last = -1
        for i, t in enumerate(self.ops):
            if t in tags: last = i
        assert last >= 0, tags
        return min(63, len(self.ops) - 1 - last)
    def take(self):
        r = self.L; self.L = []; return r

uid = [0]
def post(off_sgpr, imm=0, mask=None):
    so = "0" if off_sgpr is None else f"s{off_sgpr}"
    return [f"v_mov_b32 v{vPoll}, s{sTag}", f"buffer_store_dword v{vPoll}, v{vLane0 if mask is None else mask}, {S(sFlag,4)}, {so} offen{off(imm)} sc1"]
def spin(voff, off_sgpr, imm=0):
    uid[0] += 1; u = uid[0]
    return [f"s_mov_b32 s{sCnt}, 0x40000", f"L_spin{u}:",
            f"buffer_load_dword v{vPoll}, v{voff}, {S(sFlag,4)}, s{off_sgpr} offen{off(imm)} sc1", f"s_sub_u32 s{sCnt}, s{sCnt}, 1", "s_waitcnt vmcnt(0)",
            f"s_cbranch_scc1 L_spin_done{u}", f"v_cmp_ne_u32 vcc, s{sTag}, v{vPoll}", f"s_cbranch_vccnz L_spin{u}", f"L_spin_done{u}:"]

def setup(e):
    T = vT
    e(["s_cmp_ge_u32 s2, 256", "s_cbranch_scc1 L_end"] + stamp(0))
    e([f"s_load_dwordx2 {S(pX,2)}, s[0:1], 0", f"s_load_dwordx8 {S(pK,8)}, s[0:1], 8",
       f"s_load_dwordx4 {S(pW1,4)}, s[0:1], 48", f"s_load_dwordx8 {S(pW2,8)}, s[0:1], 64"])
    if not cfg.notouch:
        e([f"s_getpc_b64 {S(sCode,2)}", "L_pc:", f"s_mov_b32 s{sCode+2}, L_end-L_pc", f"s_mov_b32 s{sCode+3}, 0x20000",
           f"s_bfe_u32 s{sT0}, s2, {hx((3 << 16) | 3)}", f"s_lshl_b32 s{sCodeOff}, s{sT0}, 7", f"v_lshlrev_b32 v{vCode}, 10, v0",
           f"buffer_load_dword v{vPoll}, v{vCode}, {S(sCode,4)}, s{sCodeOff} offen"], "code")
    e([f"s_and_b32 s{sXcd}, s2, 7", f"s_lshr_b32 s{sT0}, s2, 3", f"s_and_b32 s{sHl}, s{sT0}, 3", f"s_lshr_b32 s{sB}, s{sT0}, 2",
       f"s_lshl_b32 s{sHead}, s{sXcd}, 2", f"s_add_u32 s{sHead}, s{sHead}, s{sHl}",
       f"v_lshrrev_b32 v{T}, 5, v0", f"v_and_b32 v{T+1}, 31, v0", f"v_lshlrev_b32 v{T+2}, 10, v{T}", f"v_lshl_add_u32 v{T+6}, v{T+1}, 4, v{T+2}",
       f"s_lshl_b32 s{sT0}, s{sB}, 18", f"s_lshl_b32 s{sT1}, s{sHead}, 13", f"s_add_u32 s{sT1}, s{sT1}, s{sT0}",
       f"s_add_u32 s{sT2}, s{sT0}, {F_OFF}",
       f"v_lshlrev_b32 v{T+2}, 4, v{T}", f"v_lshl_add_u32 v{T+7}, v{T+1}, 7, v{T+2}", f"v_add_u32 v{T+7}, 131072, v{T+7}",
       f"v_lshlrev_b32 v{T+4}, 24, v{T}", f"v_lshl_add_u32 v{T+4}, v{T+1}, 2, v{T+4}",
       "v_lshrrev_b32 v1, 6, v0", "v_and_b32 v0, 63, v0", f"v_readfirstlane_b32 s{sWave}, v1",
       "v_and_b32 v2, 15, v0", "v_lshrrev_b32 v3, 4, v0",
       "s_waitcnt lgkmcnt(0)"] + stamp(1))
    e(srd(sK, pX, f"s{sT1}", 8192))
    X, F = 64, 96
    for i in range(2): e([f"buffer_load_dwordx4 {V(X+4*i,4)}, v{T+6}, {S(sK,4)}, 0 offen{off(512*i)}"], "x")
    e(srd(sFlag, pWS, f"s{sT2}", 262144))
    e([f"buffer_load_dword v{T+5}, off, {S(sFlag,4)}, 0 sc1"], "nonce")
    e(srd(sXN, pWS, f"s{sT0}", 262144))
    e([f"s_mul_i32 s{sJ}, s{sXcd}, 3", f"s_add_u32 s{sJ}, s{sJ}, s{sHl}",
       f"s_lshr_b32 s{sSplit}, s{sXcd}, 1", f"s_add_u32 s{sT0}, s{sSplit}, 24",
       f"s_cmp_eq_u32 s{sHl}, 3", f"s_cselect_b32 s{sJ}, s{sT0}, s{sJ}",
       f"s_lshr_b32 s{sT0}, s{sB}, 2", f"s_xor_b32 s{sT0}, s{sT0}, s{sXcd}", f"s_and_b32 s{sT0}, s{sT0}, 1",
       f"s_cmp_eq_u32 s{sHl}, 3", f"s_cselect_b32 s{sInact}, s{sT0}, 0"])
    e([f"v_lshlrev_b32 v{T}, 2, v3", f"v_xor_b32 v{T}, v{T}, v2", f"v_lshlrev_b32 v{T}, 4, v{T}",
       f"v_lshl_add_u32 v{T+1}, v1, 4, v3", f"v_lshl_add_u32 v{vDWQ}, v{T+1}, 13, v{T}"])
    for j in range(1, 4): e([f"v_add_u32 v{vDWQ+j}, {j*(4*8192-1024)}, v{vDWQ}"])
    e([f"v_lshrrev_b32 v{T}, 3, v0", f"v_and_b32 v{T+1}, 7, v0",
       f"v_lshl_add_u32 v{T+3}, v1, 4, v{T}", f"v_lshlrev_b32 v{T+6}, 8, v{T+3}", f"v_lshl_add_u32 v{T+6}, v{T+1}, 4, v{T+6}",
       f"v_and_b32 v{T+2}, 2, v{T}", f"v_xor_b32 v{T+1}, v{T+1}, v{T+2}", f"v_mul_u32_u24 v{T}, 3584, v{T+3}",
       f"v_lshl_add_u32 v{vDW13}, v{T+1}, 4, v{T}",
       f"v_xor_b32 v{T+1}, 4, v{T+1}", f"v_lshl_add_u32 v{vDW13+1}, v{T+1}, 4, v{T}",
       f"v_add_u32 v{vDW13+1}, {8*3584-1024}, v{vDW13+1}"])
    e([f"s_lshl_b32 s{sM0A}, s{sWave}, 12", f"s_lshl_b32 s{sM0B}, s{sWave}, 11",
       f"s_add_u32 s{sM0B}, s{sM0B}, 65536", f"s_add_u32 s{sM0V}, s{sM0A}, 65536"])
    e([f"s_lshl_b32 s{sT0}, s{sHead}, 8"] + srd(sWQ, pWQ, f"s{sT0}", 4194304) + [f"s_sub_u32 s{sWQ+2}, s{sWQ+2}, s{sT0}"])
    e([f"s_lshl_b32 s{sT0}, s{sJ}, 7"] + srd(sW1, pW1, f"s{sT0}", 1835008) + srd(sW3, pW3, f"s{sT0}", 1835008))
    e([f"s_sub_u32 s{sW1+2}, s{sW1+2}, s{sT0}", f"s_cmp_eq_u32 s{sInact}, 1", f"s_cselect_b32 s{sW1+2}, 0, s{sW1+2}", f"s_mov_b32 s{sW3+2}, s{sW1+2}"])
    e(flat(dma_w(0)), ("it", 0))
    e([f"s_lshr_b32 s{sT0}, s{sHead}, 1", f"s_lshl_b32 s{sT0}, s{sT0}, 14", f"s_and_b32 s{sT1}, s{sHead}, 1", f"s_lshl_b32 s{sT1}, s{sT1}, 7",
       f"s_add_u32 s{sSoff2}, s{sT0}, s{sT1}", f"v_lshlrev_b32 v{T}, 4, v0", f"s_add_u32 s{sT0}, s{sM0B}, 65536", f"v_add_u32 v{T+3}, s{sT0}, v{T}",
       f"s_mov_b32 s{sT2}, 0xffff0000"])
    n0 = e.need("x")
    for i in range(2):
        e([f"s_waitcnt vmcnt({n0 + 1 - i})"])
        for j in range(4):
            r = 4*i + j
            e([f"v_lshlrev_b32 v{F+2*r}, 16, v{X+r}", f"v_and_b32 v{F+2*r+1}, s{sT2}, v{X+r}"])
    M, Vr, U = 80, 84, 88
    e([f"v_pk_add_f32 {V(M,2)}, {V(F,2)}, {V(F+2,2)}", f"v_pk_add_f32 {V(M+2,2)}, {V(F+4,2)}, {V(F+6,2)}"])
    for p in range(4, 8): e([f"v_pk_add_f32 {V(M+2*(p&1),2)}, {V(M+2*(p&1),2)}, {V(F+2*p,2)}"])
    def red(r):
        o = [f"v_pk_add_f32 {V(r,2)}, {V(r,2)}, {V(r+2,2)}", f"v_add_f32 v{r}, v{r}, v{r+1}"]
        for sh in (1, 2, 4, 8): o += ["s_nop 1", f"v_add_f32_dpp v{r}, v{r}, v{r} row_ror:{sh} row_mask:0xf bank_mask:0xf"]
        o += [f"v_mov_b32 v{r+1}, v{r}", "s_nop 1", f"v_permlane16_swap_b32 v{r}, v{r+1}", f"v_add_f32 v{r}, v{r}, v{r+1}"]
        return o + [f"v_mul_f32 v{r}, {hx(f2u(1/512.))}, v{r}"]
    e(red(M) + [f"v_mov_b32 v{M+1}, v{M}"])
    for p in range(8):
        u = U + 2*(p & 1); vr = V(Vr+2*(p&1),2)
        e([f"v_pk_add_f32 {V(u,2)}, {V(F+2*p,2)}, {V(M,2)} neg_lo:[0,1] neg_hi:[0,1]",
           f"v_pk_fma_f32 {vr}, {V(u,2)}, {V(u,2)}, {vr}" if p > 1 else f"v_pk_mul_f32 {vr}, {V(u,2)}, {V(u,2)}"])
    e(red(Vr))
    e([f"v_cvt_pk_bf16_f32 v{M}, v{M}, v{Vr}", f"v_and_b32 v{Vr}, s{sT2}, v{M}", f"v_lshlrev_b32 v{M}, 16, v{M}",
       f"v_add_f32 v{Vr}, {hx(f2u(1e-5))}, v{Vr}", f"v_cvt_pk_bf16_f32 v{Vr}, v{Vr}, v{Vr}", f"v_and_b32 v{Vr}, s{sT2}, v{Vr}",
       f"v_sqrt_f32 v{Vr}, v{Vr}", f"v_mov_b32 v{M+1}, v{M}", f"v_cvt_pk_bf16_f32 v{Vr}, v{Vr}, v{Vr}", f"v_and_b32 v{Vr}, s{sT2}, v{Vr}",
       f"v_rcp_f32 v{Vr}, v{Vr}", "s_nop 0", f"v_mov_b32 v{Vr+1}, v{Vr}"])
    for p in range(8):
        a = F + 2*p
        e([f"v_pk_add_f32 {V(a,2)}, {V(a,2)}, {V(M,2)} neg_lo:[0,1] neg_hi:[0,1]", f"v_cvt_pk_bf16_f32 v{U}, v{a}, v{a+1}",
           f"v_lshlrev_b32 v{a}, 16, v{U}", f"v_and_b32 v{a+1}, s{sT2}, v{U}",
           f"v_pk_mul_f32 {V(a,2)}, {V(a,2)}, {V(Vr,2)}", f"v_cvt_pk_bf16_f32 v{X+p}, v{a}, v{a+1}"])
        if p % 4 == 3: e([f"ds_write_b128 v{T+7}, {V(X+p-3,4)}{off(4096*(p >> 2))}"])
    e(["s_waitcnt lgkmcnt(0)", "s_barrier", f"ds_read_b128 {V(X+8,4)}, v{T+3}", f"ds_read_b128 {V(X+12,4)}, v{T+3} offset:1024",
       f"s_lshl_b32 s{sT1}, s{sHead}, 7", f"s_add_u32 s{sT1}, s{sT1}, {FX}"])
    for i in range(2): e([f"s_waitcnt lgkmcnt({1-i})", f"buffer_store_dwordx4 {V(X+8+4*i,4)}, v{T+6}, {S(sXN,4)}, s{sSoff2} offen{off(2048*i)} sc1"], "xn")
    e(stamp(2))
    e([f"v_lshlrev_b32 v{T}, 4, v0", f"v_lshl_add_u32 v{vOX}, v1, 16, v{T}"])
    for q in range(1, 4): e([f"v_add_u32 v{vOX+q}, {q*16384}, v{vOX}"])
    e(["s_waitcnt vmcnt(0)", f"v_readfirstlane_b32 s{sTag}, v{T+5}", "s_barrier",
       f"s_mul_i32 s{sTag}, s{sTag}, 0x9e3779b5", f"s_add_u32 s{sTag}, s{sTag}, 0x7f4a7c15"] + stamp(3))
    e(post(sT1, 0, T+4), "sig")
    e([f"v_lshrrev_b32 v{T}, 2, v2", f"v_and_b32 v{T+1}, 3, v2",
       f"v_lshl_add_u32 v{T+2}, v3, 3, v{T}", f"v_lshlrev_b32 v{T+3}, 8, v{T+2}", f"v_lshl_add_u32 v{T+3}, v{T+1}, 4, v{T+3}"])
    for ds in range(4): e([f"v_xor_b32 v{T+5}, {ds}, v{T}", f"v_lshl_add_u32 v{vAWQ+ds}, v{T+5}, 6, v{T+3}"])
    e([f"v_lshrrev_b32 v{T+6}, 3, v2", f"v_and_b32 v{T+5}, 1, v3", f"v_lshl_add_u32 v{T+6}, v{T+5}, 1, v{T+6}",
       f"v_lshlrev_b32 v{T+3}, 7, v{T+2}", f"v_lshl_add_u32 v{T+3}, v{T+1}, 3, v{T+3}", f"v_add_u32 v{T+3}, 65536, v{T+3}"])
    for nt in range(4): e([f"v_xor_b32 v{T+5}, {nt}, v{T+6}", f"v_lshl_add_u32 v{vAW13+nt}, v{T+5}, 5, v{T+3}"])
    e(rd_w(0) + rd_w(1))
    e([f"v_and_b32 v{T+5}, 7, v0", f"v_lshlrev_b32 v{T+5}, 7, v{T+5}", f"s_lshl_b32 s{sT1}, s{sWave}, 10", f"s_add_u32 s{sT1}, s{sT1}, {FX}"])
    e(spin(T+5, sT1), "spin")
    e(stamp(4))

def setupB():
    T = vT
    g = two([f"s_and_b32 s{sRh}, s{sXcd}, 1", f"s_mov_b32 s{sCb}, s{sHl}", f"s_mov_b32 s{sRetry}, 0", f"s_lshl_b32 s{sT0}, s{sHead}, 19"])
    g += two(srd(sK, pK, f"s{sT0}", 524288) + srd(sV, pV, f"s{sT0}", 524288))
    g += two([f"s_mul_i32 s{sT0}, s{sB}, {16*57344}", f"s_lshl_b32 s{sT1}, s{sJ}, 11", f"s_add_u32 s{sT0}, s{sT0}, s{sT1}", f"s_add_u32 s{sT0}, s{sT0}, {H_OFF}"])
    g += two(srd(sH, pWS, f"s{sT0}", 16*57344))
    g += [[f"s_sub_u32 s{sH+2}, s{sH+2}, s{sT1}"], [f"s_cmp_eq_u32 s{sInact}, 1", f"s_cselect_b32 s{sH+2}, 0, s{sH+2}"]]
    g += two([f"s_lshl_b32 s{sT0}, s{sB}, 21", f"s_lshl_b32 s{sT1}, s{sHead}, 12", f"s_add_u32 s{sT0}, s{sT0}, s{sT1}", f"s_add_u32 s{sT0}, s{sT0}, {O_OFF}"])
    g += two(srd(sO, pWS, f"s{sT0}", 2097152) + [f"s_sub_u32 s{sO+2}, s{sO+2}, s{sT1}"])
    L = [f"v_xor_b32 v{T+3}, v2, v3", f"v_lshlrev_b32 v{T+4}, 8, v2"]
    for ds in range(4): L += [f"v_xor_b32 v{T+5}, {4*ds}, v{T+3}", f"v_lshl_add_u32 v{vAK+ds}, v{T+5}, 4, v{T+4}"]
    L += [f"v_lshl_add_u32 v{T+2}, v3, 2, v{T}", f"v_and_b32 v{T+3}, 7, v{T+2}",
          f"v_lshlrev_b32 v{T+4}, 8, v{T+2}", f"v_lshl_add_u32 v{T+4}, v{T+1}, 3, v{T+4}", f"v_add_u32 v{T+4}, 65536, v{T+4}"]
    for dt in range(8): L += [f"v_xor_b32 v{T+5}, {dt}, v{T+3}", f"v_lshl_add_u32 v{vAV+dt}, v{T+5}, 5, v{T+4}"]
    L += [f"v_lshlrev_b32 v{T+3}, 12, v1", f"v_lshl_add_u32 v{T+3}, v3, 8, v{T+3}", f"v_xor_b32 v{T+4}, v2, v3"]
    for j in range(4): L += [f"v_xor_b32 v{T+5}, {4*j}, v{T+4}", f"v_lshl_add_u32 v{vDK+j}, v{T+5}, 4, v{T+3}"]
    L += [f"v_lshlrev_b32 v{T+4}, 1, v3", f"v_xor_b32 v{T+4}, v2, v{T+4}"]
    for j in range(2): L += [f"v_xor_b32 v{T+5}, {8*j}, v{T+4}", f"v_lshl_add_u32 v{vDV+j}, v{T+5}, 4, v{T+3}"]
    L += [f"s_mul_i32 s{sT0}, s{sWave}, {4*57344}", f"v_lshlrev_b32 v{T+3}, 4, v0", f"v_add_u32 v{vOH}, s{sT0}, v{T+3}",
          f"v_lshl_add_u32 v{vOO}, v1, 19, v{T+3}"]
    for q in range(1, 4): L += [f"v_add_u32 v{vOH+q}, {q*57344}, v{vOH}", f"v_add_u32 v{vOO+q}, {q*131072}, v{vOO}"]
    L += [f"s_mul_i32 s{sT0}, s{sWave}, {2*57344}", f"v_add_u32 v{vBH}, s{sT0}, v{T+3}", f"v_add_u32 v{vBH+1}, 57344, v{vBH}",
          f"s_mov_b32 s{sQS}, {hx(f2u(QSCALE))}", f"s_mov_b32 s{sQS+1}, {hx(f2u(QSCALE))}"]
    return [(x, None) for x in g + two(L)]

def setupC():
    T = vT
    g = two([f"s_lshl_b32 s{sT0}, s{sCb}, 8", f"s_mul_i32 s{sT1}, s{sSplit}, {448*1024}"]) + [[f"s_add_u32 s{sT1}, s{sT1}, s{sT0}"]]
    g += two(srd(sW2, pW2, f"s{sT1}", 1835008) + [f"s_sub_u32 s{sW2+2}, s{sW2+2}, s{sT1}"])
    L = [f"v_lshl_add_u32 v{T}, v1, 4, v3", f"v_lshlrev_b32 v{T}, 10, v{T}", f"v_lshlrev_b32 v{T+1}, 1, v3", f"v_xor_b32 v{T+1}, v2, v{T+1}"]
    for j in range(4):
        L += [f"v_xor_b32 v{T+2}, {8*(j&1)}, v{T+1}", f"v_lshl_add_u32 v{vDC+j}, v{T+2}, 4, v{T}"] + ([f"v_add_u32 v{vDC+j}, {3072*j}, v{vDC+j}"] if j else [])
    g += two(L)
    g += two([f"s_lshl_b32 s{sT1}, s{sSplit}, 20", f"s_add_u32 s{sT1}, s{sT1}, s{sT0}"])
    g += two(srd(sWO, pWO, f"s{sT1}", 1048576) + [f"s_sub_u32 s{sWO+2}, s{sWO+2}, s{sT0}"])
    g += two([f"s_lshl_b32 s{sT2}, s{sB}, 1", f"s_add_u32 s{sT2}, s{sT2}, s{sRh}",
              f"s_mul_i32 s{sT0}, s{sT2}, {8*57344}", f"s_mul_i32 s{sT1}, s{sSplit}, 14336", f"s_add_u32 s{sT0}, s{sT0}, s{sT1}", f"s_add_u32 s{sT0}, s{sT0}, {H_OFF}"])
    g += two(srd(sHr, pWS, f"s{sT0}", 8*57344))
    g += two([f"s_lshl_b32 s{sT0}, s{sT2}, 20", f"s_lshl_b32 s{sT1}, s{sSplit}, 15", f"s_add_u32 s{sT0}, s{sT0}, s{sT1}", f"s_add_u32 s{sT0}, s{sT0}, {O_OFF}"])
    g += two(srd(sOr, pWS, f"s{sT0}", 1048576))
    L = [f"s_lshr_b32 s{sColB}, s{sSplit}, 1", f"s_lshl_b32 s{sColB}, s{sColB}, 7",
         f"s_mul_i32 s{sT0}, s{sCb}, {2*131072 if cfg.rot else 0}", f"s_add_u32 s{sColB}, s{sColB}, s{sT0}", f"s_xor_b32 s{sColA}, s{sColB}, 128",
         f"v_and_b32 v{T}, 32, v0", f"v_lshlrev_b32 v{T}, 19, v{T}", f"v_lshl_add_u32 v{vLane0}, v0, 2, v{T}",
         f"v_lshlrev_b32 v{vL4}, 7, v0", f"v_lshl_add_u32 v{vThr0}, v1, 25, v{vLane0}",
         f"v_lshlrev_b32 v{T}, 4, v0", f"v_lshl_add_u32 v{vBO}, v1, 18, v{T}", f"v_add_u32 v{vBO+1}, 131072, v{vBO}",
         f"s_lshl_b32 s{sT0}, s{sB}, 15", f"s_sub_u32 s{sT0}, s{sT0}, {4*262144}",
         f"v_lshrrev_b32 v{T}, 1, v2", f"v_lshl_add_u32 v{T}, v1, 3, v{T}", f"v_lshlrev_b32 v{T}, 10, v{T}", f"v_and_b32 v{T+1}, 1, v0",
         f"v_lshl_add_u32 v{T}, v{T+1}, 7, v{T}", f"v_lshl_add_u32 v{T}, v3, 28, v{T}", f"v_add_u32 v{vTWo}, s{sT0}, v{T}",
         f"s_mul_i32 s{sT0}, s{sB}, {14*1024}", f"s_sub_u32 s{sT0}, s{sT0}, {4*112*1024}",
         f"v_mul_u32_u24 v{T}, 7, v1", f"v_add_u32 v{T}, v{T}, v0", f"v_and_b32 v{T+1}, 1, v{T}", f"v_lshrrev_b32 v{T}, 1, v{T}",
         f"v_lshlrev_b32 v{T}, 10, v{T}", f"v_lshl_add_u32 v{T}, v{T+1}, 7, v{T}", f"v_add_u32 v{T+1}, 1, v0", f"v_lshrrev_b32 v{T+1}, 3, v{T+1}",
         f"v_lshl_add_u32 v{T}, v{T+1}, 26, v{T}", f"v_add_u32 v{vTW2}, s{sT0}, v{T}",
         f"s_lshl_b32 s{sT0}, s{sHead}, 18", f"v_add_u32 v{T}, s{sT0}, v{vThr0}"]
    g += two(L)
    return [(x, None) for x in g] + [(post(None, 0, T), "sig")]

def dma_w(c):
    sl = (c & 3) * 16384
    g = [[f"s_add_u32 m0, s{sM0A}, {sl}", f"s_mov_b32 s{sSoff}, {c*524288}", f"buffer_load_dwordx4 v{vDWQ}, {S(sWQ,4)}, s{sSoff} offen lds"]]
    for j in range(1, 4): g.append([f"buffer_load_dwordx4 v{vDWQ+j}, {S(sWQ,4)}, s{sSoff} offen offset:{1024*j} lds"])
    g.append([f"s_add_u32 m0, s{sM0B}, {sl}", f"s_mov_b32 s{sSoff}, {c*229376}", f"buffer_load_dwordx4 v{vDW13}, {S(sW1,4)}, s{sSoff} offen lds"])
    g.append([f"buffer_load_dwordx4 v{vDW13+1}, {S(sW1,4)}, s{sSoff} offen offset:1024 lds"])
    g.append([f"s_add_u32 m0, s{sM0B}, {sl+8192}", "s_nop 0", f"buffer_load_dwordx4 v{vDW13}, {S(sW3,4)}, s{sSoff} offen lds"])
    g.append([f"buffer_load_dwordx4 v{vDW13+1}, {S(sW3,4)}, s{sSoff} offen offset:1024 lds"])
    return g
def ld_x(c):
    g = []
    for qs in range(4):
        for ks in range(2):
            pre = [f"s_movk_i32 s{sSoff2}, {c*2048}"] if (qs == 0 and ks == 0) else []
            g.append(pre + [f"buffer_load_dwordx4 {A(aX + 32*(c%3) + 8*qs + 4*ks, 4)}, v{vOX+qs}, {S(sXN,4)}, s{sSoff2} offen{off(1024*ks)} sc1"])
    return g
KVM = lambda: ["", " sc1", " nt", " sc0 sc1", " sc0"][cfg.kvmod]
def dma_k(n, soff):
    return [[f"s_add_u32 m0, s{sM0A}, {(n & 3) * 16384}"]] + [[f"buffer_load_dwordx4 v{vDK+j}, {S(sK,4)}, {soff} offen{off(1024*j)}{KVM()} lds"] for j in range(4)]
def dma_v(n, soff):
    return [[f"s_add_u32 m0, s{sM0V}, {(n & 3) * 16384}"]] + [[f"buffer_load_dwordx4 v{vDV+(j&1)}, {S(sV,4)}, {soff} offen{off(1024*j)}{KVM()} lds"] for j in range(4)]
def dma_c(n):
    m0 = f"s_add_u32 m0, s{sM0A}, {SLOT[n] * 16384}"
    if n < 7:
        return [[m0, f"s_mov_b32 s{sSoff}, {n*65536}"]] + [[f"buffer_load_dwordx4 v{vDC+j}, {S(sW2,4)}, s{sSoff} offen{off(1024*j)} lds"] for j in range(4)]
    c = (n - 7) >> 1
    return [[m0, f"s_xor_b32 s{sSoff}, s{sColA if n & 1 else sColB}, {c*131072}"]] + \
           [[f"buffer_load_dwordx4 v{vDD+j}, {S(sWO,4)}, s{sSoff} offen{off(1024*j)} lds"] for j in range(4)]
def ld_b(c):
    k, r = hreg(c); g = []
    for ql in range(2):
        for ks in range(2):
            pre = [f"s_movk_i32 s{sSoff2}, {c*2048}"] if ql + ks == 0 else []
            g.append(pre + [f"buffer_load_dwordx4 {R(k, r + 8*ql + 4*ks, 4)}, v{vBH+ql}, {S(sHr,4)}, s{sSoff2} offen{off(1024*ks)} sc1"])
    return g
def ld_o(c):
    g = []
    for ql in range(2):
        for ks in range(4):
            pre = [f"s_xor_b32 s{sSoff2}, s{sRot}, {c*4096}"] if ql + ks == 0 else []
            g.append(pre + [f"buffer_load_dwordx4 {A(32*c + 16*ql + 4*ks, 4)}, v{vBO+ql}, {S(sOr,4)}, s{sSoff2} offen{off(1024*ks)} sc1"])
    return g
def rd_w(gb):
    c, nt = gb >> 4, gb & 15
    sl = (c & 3) * 16384; buf = aW + 8 * (gb % 3); o = []
    for ks in range(2):
        for hf in range(2):
            d = A(buf + 4*ks + 2*hf, 2)
            if nt < 8: o.append(f"ds_read_b64_tr_b16 {d}, v{vAWQ + (nt>>1)} offset:{sl + ks*8192 + hf*1024 + 8*(nt&1)}")
            else: o.append(f"ds_read_b64_tr_b16 {d}, v{vAW13 + (nt&3)} offset:{sl + ((nt-8)>>2)*8192 + ks*4096 + hf*512}")
    return o

def accA(nt, qs):
    if nt < 8: return V(vAccQ + 32*qs + 4*nt, 4)
    if nt < 12: return V(vAccG + 16*qs + 4*(nt-8), 4)
    return A(aAccU + 16*qs + 4*(nt-12), 4)
def phaseA(e):
    e(flat(ld_x(0)), ("it", 0)); e(flat(dma_w(1)), ("it", 1)); e(flat(ld_x(1)), ("it", 1))
    e([f"s_waitcnt vmcnt({e.need(('it', 0))}) lgkmcnt(4)"] + stamp(5))
    pend = setupB()
    for c in range(8):
        it = c + 2
        if it < 8: G = [(g, ("it", it)) for g in dma_w(it) + ld_x(it)]
        elif it == 8:
            assert not pend
            pend = setupC()
            g = dma_k(0, "0"); G = [(x, ("it", it)) for x in [g[0] + ["s_nop 0"] + g[1]] + g[2:]] + [([], None)] * 4
            for n in (1, 2):
                g = dma_c(n); G += [(x, ("c", n)) for x in [g[0] + g[1]] + g[2:]]
        else:
            g = dma_k(1, f"s{sTile}"); G = [[f"s_movk_i32 s{sTile}, 16384"] + g[0] + [f"s_movk_i32 s{sTile+1}, 0"] + g[1]] + g[2:]
            g = dma_v(1, "0"); G += [g[0] + ["s_nop 0"] + g[1]] + g[2:]
            G = [(x, ("it", it)) for x in G]
        for nt in range(16):
            gb = 16*c + nt
            rds = rd_w(gb + 2) if gb + 2 < 128 else []
            k = 0
            for qs in range(4):
                d = accA(nt, qs)
                for kk in range(2):
                    ks = kk if qs % 2 == 0 else 1 - kk
                    e([mfma(d, A(aW + 8*(gb%3) + 4*ks, 4), A(aX + 32*(c%3) + 8*qs + 4*ks, 4), "0" if (c == 0 and kk == 0) else d)])
                    if k < 4 and rds: e([rds[k]])
                    if k == 5 and nt < len(G): e(*G[nt])
                    if k in (4, 6) and pend: e(*pend.pop(0))
                    if k == 7:
                        if nt == 13 and c < 7: e([f"s_waitcnt vmcnt({e.need(('it', c+1))}) lgkmcnt(4)", "s_barrier"])
                        elif gb + 2 < 128: e(["s_waitcnt lgkmcnt(4)"])
                        elif gb + 1 < 128: e(["s_waitcnt lgkmcnt(0)"])
                    k += 1
    assert not pend
    e(stamp(6))
    e([f"s_waitcnt vmcnt({e.need(('it', 8))})", "s_barrier"])
    e([f"ds_read_b128 {A(aK + 4*ds, 4)}, v{vAK+ds}" for ds in range(4)])
    for qs in range(4):
        for ds in range(4):
            r = vAccQ + 32*qs + 8*ds; q = vQ + 16*qs + 4*ds
            for x in range(0, 8, 2): e([f"v_pk_mul_f32 {V(r+x,2)}, {V(r+x,2)}, {S(sQS,2)}"])
            for x in range(0, 8, 2): e([f"v_cvt_pk_bf16_f32 v{q+x//2}, v{r+x}, v{r+x+1}"])
    e([f"s_mov_b32 s{sQS}, {hx(f2u(-LOG2E))}", f"s_mov_b32 s{sQS+1}, {hx(f2u(-LOG2E))}", "s_waitcnt lgkmcnt(0)"])
    U_, E_ = 208, 240
    for qs in range(4):
        d = V(vS + 4*qs, 4)
        for ds in range(4):
            e([mfma(d, A(aK + 4*ds, 4), V(vQ + 16*qs + 4*ds, 4), "0" if ds == 0 else d)])
            x = 8*qs + 2*ds
            e([f"v_accvgpr_read_b32 v{U_+x}, a{aAccU+x}", f"v_accvgpr_read_b32 v{U_+x+1}, a{aAccU+x+1}"])
    for qs in range(4):
        G_ = vAccG + 16*qs; Uq = U_ + 16*(qs & 1)
        if qs >= 2:
            for x in range(16): e([f"v_accvgpr_read_b32 v{Uq+x}, a{aAccU + 16*qs + x}"])
        for x in range(0, 16, 2): e([f"v_pk_mul_f32 {V(E_+x,2)}, {V(G_+x,2)}, {S(sQS,2)}"])
        for x in range(16): e([f"v_exp_f32 v{E_+x}, v{E_+x}"])
        for x in range(0, 16, 2): e([f"v_pk_mul_f32 {V(G_+x,2)}, {V(G_+x,2)}, {V(Uq+x,2)}"])
        for x in range(0, 16, 2): e([f"v_pk_add_f32 {V(E_+x,2)}, {V(E_+x,2)}, 1.0 op_sel_hi:[1,0]"])
        for x in range(16): e([f"v_rcp_f32 v{E_+x}, v{E_+x}"])
        for x in range(0, 16, 2): e([f"v_pk_mul_f32 {V(G_+x,2)}, {V(G_+x,2)}, {V(E_+x,2)}"])
        for x in range(0, 16, 2): e([f"v_cvt_pk_bf16_f32 v{G_+x//2}, v{G_+x}, v{G_+x+1}"])
        for pr in range(2): e([f"buffer_store_dwordx4 {V(G_+4*pr,4)}, v{vOH+qs}, {S(sH,4)}, 0 offen{off(1024*pr)} sc1"], "h")
    T = vT
    for qs in range(4):
        s = vS + 4*qs
        e([f"v_max3_f32 v{T+qs}, v{s}, v{s+1}, v{s+2}", f"v_max_f32 v{T+qs}, v{T+qs}, v{s+3}"])
    for r in range(4): e([f"v_mov_b32 v{vOnes+r}, 0x3f803f80"])
    e([f"v_and_b32 v{T+4}, 1, v0", f"v_mul_u32_u24 v{T+4}, 0xaaaa, v{T+4}", f"v_add_u32 v{vIdx}, 0x4444, v{T+4}"])

def max_to_c(e):
    T = vT
    for sw in ("v_permlane32_swap_b32", "v_permlane16_swap_b32"):
        for qs in range(4): e([f"v_mov_b32 v{T+4+qs}, v{T+qs}"])
        e(["s_nop 0"])
        for qs in range(4): e([f"{sw} v{T+qs}, v{T+4+qs}"])
        for qs in range(4): e([f"v_max_f32 v{T+qs}, v{T+qs}, v{T+4+qs}"])
    for qs in range(4):
        for r in range(4): e([f"v_sub_f32 v{vC+4*qs+r}, 0, v{T+qs}"])
    for r in range(16): e([f"v_accvgpr_write_b32 a{aL+r}, 0"])
    e([f"ds_read_b128 {A(aK + 16, 4)}, v{vAK} offset:4096"])

def attn_iter(e, i):
    qk = i + 1 < NT; pv = i >= 0
    Pn = vP + 32 * ((i + 1) & 1); Pc = vP + 32 * (i & 1)
    n = i + 3
    free = [(b, g) for b in range(16) for g in ((5, 7) if b % 2 == 0 else (1, 5, 7)) if (b, g) != (11, 1)]
    extra = {}
    def put(groups, tag, slots):
        assert len(groups) <= len(slots), (i, len(groups), len(slots))
        for g, sl in zip(groups, slots): extra.setdefault(sl, []).append((g, tag))
    kslots = [(0, 5), (0, 7), (1, 5), (2, 5), (3, 5), (4, 5)]
    vslots = [(4, 7), (5, 1), (5, 5), (6, 5), (7, 5), (8, 5)]
    if n < NT: put([[f"s_add_u32 s{sTile}, s{sTile}, 16384"]] + dma_k(n, f"s{sTile}"), ("it", 8 + n), kslots)
    if n - 1 < NT: put([[f"s_add_u32 s{sTile+1}, s{sTile+1}, 16384"]] + dma_v(n, f"s{sTile+1}"), ("it", 8 + n), vslots)
    if i == 0:
        put([[f"s_lshl_b32 s{sT1}, s{sHead}, 7", f"s_add_u32 s{sT1}, s{sT1}, {FH}"], post(sT1, 0, vThr0)], "sig", [(11, 5), (11, 7)])
        L = [f"s_lshl_b32 s{sT0}, s{sSplit}, 6"]
        for nt in range(8):
            L += [f"v_xor_b32 v{vAC[1][nt]}, s{sT0}, v{vAV+nt}", f"v_subrev_u32 v{vAC[0][nt]}, 65536, v{vAC[1][nt]}", f"v_add_u32 v{vAC[2][nt]}, 65536, v{vAC[1][nt]}"]
        put(one(L), None, [x for x in free if x not in extra])
    if 1 <= i <= 28 and not cfg.notouch:
        if i % 4 == 1: put([[f"buffer_load_dword v{vT+5}, v{vCode}, {S(sCode,4)}, s{sCodeOff} offen"]], "touch", [(9, 5)])
        if i % 4 == 2: put([[f"v_add_u32 v{vTWo}, 262144, v{vTWo}"], [f"buffer_load_dword v{vT+6}, v{vTWo}, {S(sWO,4)}, 0 offen"]], "touch", [(9, 1), (9, 5)])
        if i % 4 == 3: put([[f"v_add_u32 v{vTW2}, {112*1024}, v{vTW2}"], [f"buffer_load_dword v{vT+7}, v{vTW2}, {S(sW2,4)}, 0 offen"]], "touch", [(9, 1), (9, 5)])
    if i == 29:
        put([[f"v_and_b32 v{vT+1}, 4095, v{vL4}", f"s_movk_i32 s{sT1}, {FH}", f"buffer_load_dword v{vPoll}, v{vT+1}, {S(sFlag,4)}, s{sT1} offen sc1"]], "poll", [(0, 5)])
        put(dma_c(0), ("c", 0), kslots[1:])
        put([[f"v_cmp_ne_u32 vcc, s{sTag}, v{vPoll}"], ["s_cbranch_vccnz L_hwait", "L_hok:"]], None, [(11, 5), (11, 7)])
        put(ld_b(0), ("b", 0), [(12, 5), (13, 1), (13, 5), (14, 5)]); put(ld_b(1)[:2], ("b", 1), [(15, 1), (15, 5)])
    if i == 30:
        put(ld_b(1)[2:], ("b", 1), [(0, 5), (1, 1)])
        put(dma_c(3), ("c", 3), kslots[1:]); put(dma_c(4), ("c", 4), vslots[1:])
        put(ld_b(2), ("b", 2), [(2, 7), (3, 7), (6, 7), (7, 7)]); put(ld_b(3), ("b", 3), [(9, 1), (9, 5), (10, 5), (11, 5)])
        put(ld_b(6), ("b", 6), [(12, 5), (13, 5), (14, 5), (15, 5)])
    for b in range(16):
        kt, qs = b >> 2, b & 3
        M = []
        if qk:
            d = V(vS + 4*(b & 3), 4)
            order = range(4) if qs % 2 == 0 else range(3, -1, -1)
            for m, ds in enumerate(order):
                M.append(mfma(d, A(aK + 16*(kt & 1) + 4*ds, 4), V(vQ + 16*qs + 4*ds, 4), V(vC + 4*qs, 4) if m == 0 else d))
        else: M += [None] * 4
        if pv:
            dt = b >> 1
            for h in range(2):
                q2 = 2*(b & 1) + h
                d = A(aO + 16*dt + 4*q2, 4)
                for kk in range(2):
                    ks = kk if h == 0 else 1 - kk
                    M.append(mfma(d, A(aV + 8*(dt & 1) + 4*ks, 4), V(Pc + 8*q2 + 4*ks, 4), "0" if (i == 0 and kk == 0) else d))
        else: M += [None] * 4
        G = [[] for _ in range(8)]
        if b > 0: sm, pb, Pd = qk, b - 1, Pn
        else: sm, pb, Pd = pv, 15, Pc
        if sm:
            s = vS + 4*(pb & 3); pk, pq = pb >> 2, pb & 3
            pd = Pd + 8*pq + 4*(pk >> 1) + 2*(pk & 1)
            for r in range(4): G[2*r].append(f"v_exp_f32 v{s+r}, v{s+r}")
        if b % 2 == 0: G[1].append("s_waitcnt lgkmcnt(1)")
        if b == 11 and qk: G[1].append("@bar")
        dtn = (b >> 1) + 1; vt = i
        if dtn == 8: dtn, vt = 0, i + 1
        if 0 <= vt < NT:
            ks = b & 1; sl = ((vt + 1) & 3) * 16384
            for hf in range(2):
                G[1 + 2*hf].append(f"ds_read_b64_tr_b16 {A(aV + 8*(dtn & 1) + 4*ks + 2*hf, 2)}, v{vAV+dtn} offset:{sl + ks*8192 + hf*4096}")
        if sm: G[3].append(f"v_cvt_pk_bf16_f32 v{pd}, v{s}, v{s+1}")
        u = b + 1; ktn, j, ktile = (u >> 2) + 1, u & 3, i + 1
        if ktn >= 4: ktn, ktile = ktn - 4, i + 2
        if ktile < NT:
            G[5].append(f"ds_read_b128 {A(aK + 16*(ktn & 1) + 4*j, 4)}, v{vAK+j} offset:{(ktile & 3)*16384 + ktn*4096}")
        elif b % 2 == 1: G[7].append("s_waitcnt lgkmcnt(0)")
        if sm: G[7].append(f"v_cvt_pk_bf16_f32 v{pd+1}, v{s+2}, v{s+3}")
        for m in range(8):
            if M[m] is not None: e([M[m]])
            elif m in (3, 7) and sm: e(["s_nop 0"])
            for x in G[m]:
                if x == "@bar":
                    tags = [("it", 8 + i + 2)] + (["h"] if i == 0 else []) + (["poll"] if i == 29 else [])
                    e([f"s_waitcnt vmcnt({e.need(*tags)})", "s_barrier"])
                else: e([x])
            for g, tag in extra.get((b, m), []):
                e([x for x in g if not (cfg.nodma and isvm(x) and 0 < i < 29)], tag)
        sb = (2, 6, 10, 14)
        if pv and b in sb:
            q2 = sb.index(b)
            e([f"v_smfmac_f32_16x16x64_bf16 {A(aL + 4*q2, 4)}, {V(vOnes,4)}, {V(Pc + 8*q2, 8)}, v{vIdx}"])
        if not pv: e(["s_nop 1" if b else "s_nop 6"])

def o_group(n):
    j, qs = n >> 2, n & 3
    E = vP + 8*(n & 1); D = vP + 16 + 4*(n & 3); L = []
    for t in range(2):
        for r in range(4): L.append(f"v_accvgpr_read_b32 v{E+4*t+r}, a{aO + 16*(2*j+t) + 4*qs + r}")
    L += [f"v_mul_f32 v{E+x}, v{E+x}, v{vT+2*qs}" for x in range(8)]
    L += [f"v_cvt_pk_bf16_f32 v{D+x//2}, v{E+x}, v{E+x+1}" for x in range(0, 8, 2)]
    L.append(f"buffer_store_dwordx4 {V(D,4)}, v{vOO+qs}, {S(sO,4)}, 0 offen{off(1024*j)} sc1")
    return L
NO31 = 5
def attn_last(e):
    T = vT; Pc = vP + 32; sl = 0
    ssum = lambda q: f"v_smfmac_f32_16x16x64_bf16 {A(aL + 4*q, 4)}, {V(vOnes,4)}, {V(Pc + 8*q, 8)}, v{vIdx}"
    s = vS + 12; pd = Pc + 24 + 6
    e([ssum(0), f"v_exp_f32 v{s}, v{s}", ssum(1), f"v_exp_f32 v{s+1}, v{s+1}", ssum(2), f"v_exp_f32 v{s+2}, v{s+2}"])
    vm = [(g, ("c", 5)) for g in dma_c(5)] + [(g, ("b", 4)) for g in ld_b(4)] + [(g, ("c", 6)) for g in dma_c(6)] + [(g, ("b", 5)) for g in ld_b(5)]
    vt = []
    for qs in range(4): vt += [f"v_accvgpr_read_b32 v{T+2*qs}, a{aL+4*qs}", f"v_accvgpr_read_b32 v{T+2*qs+1}, a{aL+4*qs+1}"]
    vt += [f"v_add_f32 v{T+2*qs}, v{T+2*qs}, v{T+2*qs+1}" for qs in range(4)]
    vt += [f"v_add_f32 v{T+1}, v{T}, v{T+2}", f"v_add_f32 v{T+3}, v{T+4}, v{T+6}", f"v_add_f32 v{T+1}, v{T+1}, v{T+3}",
           f"v_cmp_nge_f32 vcc, {hx(f2u(2.0**40 if not cfg.forcefb else 2.0))}, v{T+1}"]
    vt += [f"v_rcp_f32 v{T+2*qs}, v{T+2*qs}" for qs in range(4)]
    vt += [f"s_or_b32 s{sT0}, vcc_lo, vcc_hi", f"v_lshlrev_b32 v{T+1}, 2, v1", f"v_mov_b32 v{T+3}, s{sT0}", f"ds_write_b32 v{T+1}, v{T+3} offset:{VOTE}"]
    oq = flat([o_group(n) for n in range(NO31)])
    for b in range(16):
        dt = b >> 1; m = 0
        for h in range(2):
            q2 = 2*(b & 1) + h
            d = A(aO + 16*dt + 4*q2, 4)
            for kk in range(2):
                ks = kk if h == 0 else 1 - kk
                e([mfma(d, A(aV + 8*(dt & 1) + 4*ks, 4), V(Pc + 8*q2 + 4*ks, 4), d)])
                if b == 0: e([[f"v_exp_f32 v{s+3}, v{s+3}"], [f"v_cvt_pk_bf16_f32 v{pd}, v{s}, v{s+1}"], [f"v_cvt_pk_bf16_f32 v{pd+1}, v{s+2}, v{s+3}"], []][m])
                if b % 2 == 0 and dt < 7:
                    e([f"ds_read_b64_tr_b16 {A(aV + 8*((dt+1) & 1) + 2*m, 2)}, v{vAV+dt+1} offset:{sl + (m >> 1)*8192 + (m & 1)*4096}"])
                if vm and (b > 0 or m == 3): e(*vm.pop(0))
                if b >= 3 and b < 6:
                    for _ in range(2):
                        if vt: e([vt.pop(0)])
                if b >= 6:
                    for _ in range(3 if b % 2 else 2 + (m & 1)):
                        if oq: e([oq.pop(0)], "o")
                m += 1
        if b == 1: e([ssum(3)])
        if b % 2 == 1 and b < 15: e(["s_waitcnt lgkmcnt(0)"])
    assert not vm and not vt and not oq
    e(stamp(10))
    e([f"v_mov_b32 v{T+1}, 0", f"s_waitcnt vmcnt({e.need(('c', 0), ('c', 1), ('b', 3))}) lgkmcnt(0)", "s_barrier"])
    e([f"ds_read_b128 {V(vFr+24,4)}, v{T+1} offset:{VOTE}"] + flat([rd_f(gb) for gb in range(3)]))
    e(o_group(NO31), "o")
    r = vFr + 24
    e(["s_waitcnt lgkmcnt(8)", f"v_or_b32 v{r}, v{r}, v{r+1}", f"v_or3_b32 v{r}, v{r}, v{r+2}, v{r+3}", "s_nop 0",
       f"v_readfirstlane_b32 s{sT0}, v{r}", "s_nop 0", f"s_cmp_lg_u32 s{sT0}, 0", "s_cbranch_scc1 L_fallback", "L_nofb:"])

def rd_f(gb):
    n, nt = gb >> 3, gb & 7
    sl = SLOT[n]; o = []
    for ks in range(2):
        for hf in range(2):
            o.append(f"ds_read_b64_tr_b16 {V(vFr + 8*(gb & 3) + 4*ks + 2*hf, 2)}, v{vAC[sl >> 2][nt]} offset:{(sl & 3)*16384 + ks*8192 + hf*4096}")
    return o
SB = []
for c in range(8):
    SB += [(7 + 2*c, nt, 4 + nt, c, kp) for nt in range(4) for kp in range(2)]
    SB += [(8 + 2*c, nt, nt, c, kp) for nt in ((2, 3, 0, 1) if c == 0 else (2, 3)) for kp in range(2)]
SB += [(8 + 2*c, nt, nt, c, kp) for nt in (0, 1) for c in range(1, 8) for kp in range(2)]
def rd_s(x):
    n, nt, _, _, kp = SB[x]
    sl = SLOT[n]; o = []
    for k2 in range(2):
        for hf in range(2):
            o.append(f"ds_read_b64_tr_b16 {V(vFr + 8*(x & 3) + 4*k2 + 2*hf, 2)}, v{vAD + 4*(sl >> 2) + nt} offset:{(sl & 3)*16384 + (2*kp+k2)*4096 + hf*2048}")
    return o
PB = 16384
def part_st(acc, m, p):
    g = [[f"s_xor_b32 s{sT0}, s{sSplit}, {p}", f"s_mul_i32 s{sT0}, s{sT0}, {3*PB}"], [f"s_add_u32 s{sT0}, s{sT0}, {(p-1)*PB + m*PB//2}"]]
    for ql in range(2):
        r = acc + 32*ql + 8*p
        g += one([f"v_cvt_pk_bf16_f32 v{r+x}, v{r+2*x}, v{r+2*x+1}" for x in range(4)])
        g.append([f"buffer_store_dwordx4 {V(r,4)}, v{vPW}, {S(sPw,4)}, s{sT0} offen{off(1024*ql)} sc1"])
    return g
def part_post(stage, p):
    return [[f"s_xor_b32 s{sT1}, s{sSplit}, {p}", f"s_lshl_b32 s{sT1}, s{sT1}, 12"], [f"s_add_u32 s{sT1}, s{sT1}, s{sPf}"] + post(sT1, 512*stage + 128*p)]
def part_ld(acc, m, p):
    g = [[f"s_mul_i32 s{sT0}, s{sSplit}, {3*PB}", f"s_add_u32 s{sT0}, s{sT0}, {(p-1)*PB + m*PB//2}"]]
    for ql in range(2):
        g.append([f"buffer_load_dwordx4 {V(acc + 32*ql + 8*p + 4, 4)}, v{vPW}, {S(sPw,4)}, s{sT0} offen{off(1024*ql)} sc1"])
    return g

def phaseC(e):
    T = vT; U = 224
    pend = []
    def P(groups, tag=None): pend.extend((g, tag) for g in groups)
    def fill():
        if pend: e(*pend.pop(0))
    vq = []
    def vfill():
        if vq: e(*vq.pop(0))
    def bar(need, issue):
        assert not any(t in [("c", m) for m in need] for _, t in vq)
        e([f"s_waitcnt vmcnt({e.need(*[('c', m) for m in need])})", "s_barrier"])
        for m in issue: vq.extend((g, ("c", m)) for g in dma_c(m))
    P(one([f"v_lshrrev_b32 v{U}, 3, v0", f"v_and_b32 v{U+1}, 7, v0", f"v_and_b32 v{U+2}, 6, v{U}", f"v_xor_b32 v{U+1}, v{U+1}, v{U+2}",
           f"v_lshl_add_u32 v{U}, v1, 5, v{U}", f"v_lshlrev_b32 v{U}, 10, v{U}", f"v_lshl_add_u32 v{vDD}, v{U+1}, 4, v{U}"] +
          [f"v_add_u32 v{vDD+j}, {7168*j}, v{vDD}" for j in range(1, 4)]))
    for n in (7, 8): vq.extend((g, ("c", n)) for g in dma_c(n))
    late = [[f"s_and_b32 s{sT0}, s{sSplit}, 1", f"s_lshl_b32 s{sT0}, s{sT0}, 1"]]
    late += one([f"v_lshrrev_b32 v{U}, 2, v2", f"v_and_b32 v{U+1}, 3, v2", f"v_lshl_add_u32 v{U+2}, v3, 2, v{U}",
                 f"v_bfe_u32 v{U+3}, v{U+2}, 1, 2", f"v_xor_b32 v{U+3}, s{sT0}, v{U+3}",
                 f"v_lshlrev_b32 v{U+4}, 7, v{U+2}", f"v_lshl_add_u32 v{U+4}, v{U+1}, 3, v{U+4}"])
    for nt in range(4):
        late += one([f"v_xor_b32 v{U}, {nt}, v{U+3}", f"v_lshl_add_u32 v{vAD+nt}, v{U}, 5, v{U+4}",
                     f"v_add_u32 v{vAD+4+nt}, 65536, v{vAD+nt}", f"v_add_u32 v{vAD+8+nt}, 131072, v{vAD+nt}"])
    opre = two([f"s_lshl_b32 s{sT2}, s{sSplit}, 2", f"s_add_u32 s{sT1}, s{sT2}, s{sWave}", f"s_lshl_b32 s{sT1}, s{sT1}, 3", f"s_and_b32 s{sT2}, s{sHead}, 7",
                f"s_add_u32 s{sT1}, s{sT1}, s{sT2}", f"s_lshl_b32 s{sT1}, s{sT1}, 7", f"s_add_u32 s{sT1}, s{sT1}, {FO}"])
    P(opre + [[f"s_mul_i32 s{sRot}, s{sCb}, {2*4096 if cfg.rot else 0}"]])
    late2 = two([f"s_lshl_b32 s{sT2}, s{sRh}, 2", f"s_add_u32 s{sT2}, s{sT2}, s{sCb}",
                 f"s_lshl_b32 s{sPf}, s{sT2}, 14", f"s_lshl_b32 s{sT0}, s{sWave}, 10", f"s_add_u32 s{sPf}, s{sPf}, s{sT0}", f"s_add_u32 s{sPf}, s{sPf}, {FP}",
                 f"s_lshl_b32 s{sT0}, s{sB}, 3", f"s_add_u32 s{sT0}, s{sT0}, s{sT2}", f"s_mul_i32 s{sT0}, s{sT0}, {4*3*PB}", f"s_add_u32 s{sT0}, s{sT0}, {P_OFF}"])
    late2 += two(srd(sPw, pWS, f"s{sT0}", 4*3*PB))
    late2 += two([f"s_lshl_b32 s{sT0}, s{sB}, 1", f"s_add_u32 s{sT0}, s{sT0}, s{sRh}", f"s_lshl_b32 s{sT0}, s{sT0}, 17", f"s_lshl_b32 s{sT2}, s{sCb}, 2",
                  f"s_add_u32 s{sT2}, s{sT2}, s{sSplit}", f"s_lshl_b32 s{sT2}, s{sT2}, 6"]) + [[f"s_add_u32 s{sT0}, s{sT0}, s{sT2}"]]
    late2 += two(srd(sX, pX, f"s{sT0}", 2097152)) + two(srd(sOut, pOut, f"s{sT0}", 2097152))
    late2 += [[f"s_sub_u32 s{sX+2}, s{sX+2}, s{sT0}", f"s_mov_b32 s{sOut+2}, s{sX+2}"]]
    late2 += one([f"v_lshlrev_b32 v{vPW}, 4, v0", f"v_lshl_add_u32 v{vPW}, v1, 11, v{vPW}",
                  f"v_lshl_add_u32 v{vXo}, v1, 5, v2", f"v_lshlrev_b32 v{vXo}, 10, v{vXo}", f"v_lshl_add_u32 v{vXo}, v3, 3, v{vXo}"])
    e(stamp(11))
    oq = flat([o_group(n) for n in range(NO31 + 1, 16)])
    olast = None
    P(late)
    for n in range(7):
        bk, br = hreg(n)
        for nt in range(8):
            gb = 8*n + nt
            if nt == 5 and n == 1: bar([2, 3], [9, 10])
            if nt == 5 and n == 3: bar([4, 5, 6], [11, 12])
            if nt == 5 and n == 5: bar([6], [13, 14])
            if nt == 5 and n == 6:
                assert not pend
                bar([7, 8], [])
            if olast is not None and gb == olast + cfg.opost:
                e(stamp(23)); e([f"s_waitcnt vmcnt({e.need('o')})"]); e(post(sT1), "sig"); e(stamp(22))
            rds = rd_f(gb + 3) if gb + 3 < 56 else rd_s(gb + 3 - 56)
            k = 0
            busy = bool(oq)
            for ql in range(2):
                d = V(vAccF + 32*ql + 4*nt, 4)
                for kk in range(2):
                    ks = kk if ql == 0 else 1 - kk
                    e([mfma(d, V(vFr + 8*(gb & 3) + 4*ks, 4), R(bk, br + 8*ql + 4*ks, 4), "0" if (n == 0 and kk == 0) else d), rds[k]])
                    for _ in range((cfg.orate + 3 - k) // 4):
                        if oq:
                            e([oq.pop(0)], "o")
                            if not oq: olast = gb
                    if k == 1: fill()
                    if k in (0, 2) and gb >= cfg.wstart: vfill()
                    if k == 3:
                        w = "lgkmcnt(8)"
                        if nt == 7 and n == 3: w = f"vmcnt({e.need(('b', 4), ('b', 5), ('b', 6))}) " + w
                        e([f"s_waitcnt {w}"])
                    k += 1
    assert not pend and not oq and olast + cfg.opost < 56, (len(pend), olast)
    e(stamp(12))
    while vq: vfill()
    e(["s_barrier"])
    for n in (15, 16): e(flat(dma_c(n)), ("c", n))
    e([f"s_lshl_b32 s{sT2}, s{sSplit}, 2", f"s_lshl_b32 s{sT1}, s{sRh}, 1", f"s_lshr_b32 s{sT0}, s{sWave}, 1", f"s_add_u32 s{sT1}, s{sT1}, s{sT0}",
       f"s_add_u32 s{sT1}, s{sT1}, s{sT2}", f"s_lshl_b32 s{sT1}, s{sT1}, 10", f"s_add_u32 s{sT1}, s{sT1}, {FO}", f"v_and_b32 v{T}, 1023, v{vL4}"])
    e(spin(T, sT1), "spin"); e(stamp(13))
    e(flat(ld_o(0)), ("o", 0))
    e(flat(late2))
    for c in range(1, cfg.olead): e(flat(ld_o(c)), ("o", c))
    e([f"s_waitcnt vmcnt({e.need(('o', 0))})"] + stamp(14))
    seen = set()
    issue = {0: [17], 1: [18, 19], 2: [20], 3: [21], 4: [22]}
    for x, (n, nt, at, c, kp) in enumerate(SB):
        if x < 100 and (x == 0 or SB[x - 1][3] != c) and c + cfg.olead < 8:
            vq[0:0] = [(g, ("o", c + cfg.olead)) for g in ld_o(c + cfg.olead)] if not (vq and vq[0][1] and vq[0][1][0] == "o") else []
            assert vq[0][1] == ("o", c + cfg.olead)
        if x + 3 < 100 and SB[x + 3][3] != SB[x + 2][3]: bar([9 + 2*c, 10 + 2*c], issue.get(c, []))
        if x == 2:
            for p in (1, 2, 3): P(part_st(vAccF, 0, p), "pf")
        if x == 62:
            e([f"s_waitcnt vmcnt({e.need('pf')})"])
            for p in (1, 2, 3): P(part_post(0, p), "sig")
            P([[f"buffer_load_dwordx2 {V(T+2*y,2)}, v{vXo}, {S(sX,4)}, s{sCnt} offen{off(32*(y & 1))}"] if y & 1 else
               [f"s_mov_b32 s{sCnt}, {16384*(y >> 1)}", f"buffer_load_dwordx2 {V(T+2*y,2)}, v{vXo}, {S(sX,4)}, s{sCnt} offen"] for y in range(4)], "xr")
            P([[f"s_lshl_b32 s{sT2}, s{sSplit}, 12", f"s_add_u32 s{sT2}, s{sT2}, s{sPf}"], [f"v_and_b32 v{U}, 384, v{vL4}"], [f"v_max_u32 v{U}, 128, v{U}"]])
        if x == 84:
            assert not pend
            P([[f"buffer_load_dword v{vPoll}, v{U}, {S(sFlag,4)}, s{sT2} offen sc1"]], "poll")
        if x == 93:
            e([f"s_waitcnt vmcnt({e.need('poll')})", f"v_cmp_ne_u32 vcc, s{sTag}, v{vPoll}", "s_cbranch_vccnz L_fwait", "L_fok:"])
            for p in (1, 2, 3): P(part_ld(vAccF, 0, p), ("g", 0))
        if x == 97:
            assert not pend
            for p in (2, 3, 1): P(part_st(vAccS, 1, p), "ps")
        if x == 100: e(stamp(15))
        if x in (16, 40, 64, 92, 94): e(stamp({16: 24, 40: 25, 64: 26, 92: 28, 94: 29}[x]))
        if x == 118:
            assert not pend
            e([f"s_waitcnt vmcnt({e.need('ps')})"])
            for p in (1, 2, 3): P(part_post(1, p), "sig")
        rds = rd_s(x + 3) if x + 3 < len(SB) else []
        k = 0
        for qq in range(2):
            ql = qq if kp == 0 else 1 - qq
            d = V(vAccS + 32*ql + 4*at, 4)
            for kk in range(2):
                k2 = kk if qq == 0 else 1 - kk
                first = (ql, at) not in seen; seen.add((ql, at))
                e([mfma(d, V(vFr + 8*(x & 3) + 4*k2, 4), A(32*c + 16*ql + 4*(2*kp + k2), 4), "0" if first else d)])
                if rds: e([rds[k]])
                if k == 0 and vq: vfill()
                elif k == 2 and vq and x % 3 == 0: vfill()
                elif k == 1 or (k < 3 and x >= 93): fill()
                if k == 3:
                    left = len(SB) - 1 - x
                    w = f"lgkmcnt({4*min(2, max(0, left - 1))})" if left > 0 else ""
                    if x < 99 and SB[x + 1][3] != c: w = f"vmcnt({e.need(('o', c + 1))}) " + w
                    if w: e([f"s_waitcnt {w}"])
                k += 1
    assert not pend and not vq
    e(stamp(17))
    F_, S_, E_, X_ = vAccF, vAccS, 192, 208
    rg = lambda b, x: b + 32*(x >> 3) + (x & 7)
    e([f"s_mov_b32 s{sT0}, {hx(f2u(-LOG2E))}", f"s_mov_b32 s{sT1}, 0xffff0000"])
    def addup(b):
        for p in (1, 2, 3):
            for ql in range(2):
                r = b + 32*ql + 8*p + 4; t = 240 + 8*ql
                for y in range(4): e([f"v_lshlrev_b32 v{t+2*y}, 16, v{r+y}", f"v_and_b32 v{t+2*y+1}, s{sT1}, v{r+y}"])
                for y in range(4): e([f"v_pk_add_f32 {V(b+32*ql+2*y,2)}, {V(b+32*ql+2*y,2)}, {V(t+2*y,2)}"])
    addup(F_)
    for x in range(16): e([f"v_mul_f32 v{E_+x}, s{sT0}, v{rg(F_,x)}"])
    for x in range(16): e([f"v_exp_f32 v{E_+x}, v{E_+x}"])
    for x in range(0, 16, 2): e([f"v_pk_add_f32 {V(E_+x,2)}, {V(E_+x,2)}, 1.0 op_sel_hi:[1,0]"])
    e(spin(U, sT2, 512), "spin"); e(stamp(18))
    for p in (1, 2, 3): e(flat(part_ld(vAccS, 1, p)), ("g", 1))
    for x in range(16): e([f"v_rcp_f32 v{E_+x}, v{E_+x}"])
    for p in range(8): e([f"v_lshlrev_b32 v{X_+2*p}, 16, v{T+p}", f"v_and_b32 v{X_+2*p+1}, s{sT1}, v{T+p}"])
    for x in range(0, 16, 2): e([f"v_pk_mul_f32 {V(E_+x,2)}, {V(rg(F_,x),2)}, {V(E_+x,2)}"])
    e([f"s_movk_i32 s{sCnt}, 16384", "s_waitcnt vmcnt(0)"]); addup(S_)
    for x in range(0, 16, 2): e([f"v_pk_fma_f32 {V(X_+x,2)}, {V(E_+x,2)}, {V(rg(S_,x),2)}, {V(X_+x,2)}"])
    for p in range(8): e([f"v_cvt_pk_bf16_f32 v{T+p}, v{X_+2*p}, v{X_+2*p+1}"])
    for y in range(4): e([f"buffer_store_dwordx2 {V(T+2*y,2)}, v{vXo}, {S(sOut,4)}, {'s%d' % sCnt if y >> 1 else '0'} offen{off(32*(y & 1))}"], "out")
    e(stamp(19) + stamp_flush())

def cold_paths():
    L = []
    L += ["L_hwait:", f"s_movk_i32 s{sT1}, {FH}"] + spin(vT + 1, sT1) + ["s_branch L_hok"]
    L += ["L_fwait:"] + spin(224, sT2) + ["s_branch L_fok"]
    T = vT
    F = ["L_fallback:", f"s_cmp_lg_u32 s{sRetry}, 0", "s_cbranch_scc1 L_nofb", f"s_mov_b32 s{sRetry}, 1", f"s_mov_b32 s{sTile}, 0"]
    F += [f"v_mov_b32 v{T+qs}, 0xff800000" for qs in range(4)]
    B = ["s_waitcnt vmcnt(0) lgkmcnt(0)", "s_barrier"]
    g = dma_k(0, f"s{sTile}"); B += g[0] + ["s_nop 0"] + flat(g[1:]) + ["s_waitcnt vmcnt(0)", "s_barrier"]
    for kt in range(4):
        B += [f"ds_read_b128 {A(aK + 4*ds, 4)}, v{vAK+ds} offset:{kt*4096}" for ds in range(4)] + ["s_waitcnt lgkmcnt(0)"]
        for qs in range(4):
            d = V(vS + 4*qs, 4)
            B += [mfma(d, A(aK + 4*ds, 4), V(vQ + 16*qs + 4*ds, 4), "0" if ds == 0 else d) for ds in range(4)]
        B += ["s_nop 7"]
        for qs in range(4):
            s = vS + 4*qs
            B += [f"v_max3_f32 v{T+qs}, v{T+qs}, v{s}, v{s+1}", f"v_max3_f32 v{T+qs}, v{T+qs}, v{s+2}, v{s+3}"]
    B += [f"s_add_u32 s{sTile}, s{sTile}, 16384", f"s_cmp_lt_u32 s{sTile}, {NT*16384}"]
    E = ["s_barrier"]
    g = dma_k(0, "0"); E += g[0] + [f"s_movk_i32 s{sTile}, 16384"] + flat(g[1:])
    g = dma_k(1, f"s{sTile}"); E += g[0] + [f"s_movk_i32 s{sTile+1}, 0"] + flat(g[1:])
    g = dma_v(1, "0"); E += g[0] + ["s_nop 0"] + flat(g[1:])
    E += ["s_waitcnt vmcnt(0)", "s_barrier"]
    E += [f"ds_read_b128 {A(aK + 4*ds, 4)}, v{vAK+ds}" for ds in range(4)] + ["s_waitcnt lgkmcnt(0)"]
    L += F + ["L_fb_loop:"] + B + ["s_cbranch_scc1 L_fb_loop"] + E + ["s_branch L_attn"]
    return L, F + B + B + E

def gen():
    e = Em()
    setup(e); phaseA(e)
    pre = e.take()
    e(["L_attn:"]); max_to_c(e); e(stamp(7))
    attn_iter(e, -1); attn_iter(e, 0); e(stamp(8))
    head = e.take()
    its = {}
    for i in range(1, 29):
        attn_iter(e, i); its[i] = e.take()
    blk = flat([its[i] for i in range(1, 5)])
    for r in range(7): assert flat([its[i] for i in range(1 + 4*r, 5 + 4*r)]) == blk, r
    e(stamp(9))
    for i in range(29, NT - 1):
        attn_iter(e, i); e(stamp(i - 9))
    attn_last(e); phaseC(e)
    tail = e.take()
    cold, fbtrace = cold_paths()
    loopctl = [f"s_sub_u32 s{sLoop}, s{sLoop}, 1", f"s_cmp_lg_u32 s{sLoop}, 0", "s_cbranch_scc1 L_attn_loop"]
    text = pre + head + [f"s_movk_i32 s{sLoop}, 7", "L_attn_loop:"] + blk + loopctl + tail + ["L_end:", "s_endpgm"] + cold
    nt = lambda L: [x for x in L if ";nt" not in x]
    trace = nt(pre + head + blk + loopctl + blk + loopctl + tail)
    k = tail.index("L_nofb:")
    trace2 = nt(tail[k-60:k] + fbtrace + head)
    return text, [trace, trace2]

def main(path):
    hdr = open(f"cdna_kernels/{NAME}.s.ref").read().split("\n")
    hdr = [h for h in hdr if h.startswith(";") and "@launch" not in h]
    kn = NAME + "_kernel"
    text, traces = gen()
    bad = 0
    for t in traces:
        pr = check(t, "k")
        for p in pr[:30]: print(p)
        bad += len(pr)
    out = hdr + ["; @launch grid=(256,1,1) block=(256,1,1) lds=163840", '.amdgcn_target "amdgcn-amd-amdhsa--gfx950"', ".text",
                 f".globl {kn}", ".p2align 8", f".type {kn},@function", f"{kn}:"] + [x.replace(" ;nt", "") for x in text]
    out += ['.section .rodata,"a"', ".p2align 6", f".amdhsa_kernel {kn}", "  .amdhsa_next_free_vgpr 512", "  .amdhsa_next_free_sgpr 102",
            "  .amdhsa_accum_offset 256", "  .amdhsa_group_segment_fixed_size 0", "  .amdhsa_kernarg_size 96",
            "  .amdhsa_user_sgpr_count 2", "  .amdhsa_user_sgpr_kernarg_segment_ptr 1",
            "  .amdhsa_system_sgpr_workgroup_id_x 1", ".end_amdhsa_kernel"]
    open(path, "w").write("\n".join(out) + "\n")
    print("problems:", bad, "lines:", len(out))
if __name__ == "__main__":
    args = [a for a in sys.argv[1:] if not a.startswith("--")]
    for a in sys.argv[1:]:
        if a.startswith("--"):
            kv = a[2:].split("=")
            assert hasattr(cfg, kv[0]), kv
            setattr(cfg, kv[0], int(kv[1]) if len(kv) > 1 else True)
    main(args[0] if args else f"cdna_kernels/{NAME}.s")
```

```python
import sys, struct
sys.path.insert(0, "gen")
from asmlib import *

NAME = "recurrent_scan__mha_block_cached__glu_gated_swiglu__prompt"
XN_OFF = 0
H_OFF = 4 << 20
O_OFF = 16 << 20
P_OFF = 32 << 20
F_OFF = 60 << 20
FX, FH, FO, FP = 32*128, 64*128, 128*128, 256*128
DIAG_OFF = 64 << 20
WS_SIZE = 268435456
def f2u(x): return struct.unpack("<I", struct.pack("<f", x))[0]
def hx(x): return "0x%x" % x
QSCALE = 1.4426950408889634 / (128.0 ** 0.5)
LOG2E = 1.4426950408889634
NT = 32

class Cfg:
    stamps = False
    nodma = False
    kvmod = 0
    forcefb = False
    notouch = False
    opost = 10
    rot = 0
    badmap = 0
    outmod = 0
    spinsleep = 0
    wstart = 24
    olead = 2
    orate = 10
    x1 = 0
    x2 = 0
cfg = Cfg()

sK, sV, sWQ, sW1, sW3, sXN, sH, sO = 8, 12, 16, 20, 24, 28, 32, 36
sW2, sWO, sHr, sOr = 16, 20, 24, 28
sPw, sX, sOut = 8, 12, 32
sM0A, sM0B, sM0V, sSoff, sSoff2, sCnt, sQS, sTile = 40, 41, 42, 43, 44, 45, 46, 48
sWave, sRetry = 50, 51
pK, pV, pWQ, pWO = 52, 54, 56, 58
pW1, pW3, pW2, pOut, pDbg, pWS = 60, 62, 64, 66, 68, 70
pX = 72
sXcd, sHl, sB, sHead, sJ, sInact, sT0, sT1, sT2 = 74, 75, 76, 77, 78, 79, 80, 81, 82
sSplit, sRh, sCb, sLoop, sTag = 83, 84, 85, 86, 87
sFlag = 88
sColA, sColB, sPf = 100, 101, 47
sRot = 46
sCode, sCodeOff = 4, 3
vAK, vAV = 4, 8
vDK, vDV = 16, 20
vBH = 22
vAWQ, vAW13, vDWQ, vDW13, vOX, vOH = 24, 28, 32, 36, 40, 44
vDC, vBO, vTWo, vTW2, vLane0, vL4, vThr0 = 32, 36, 38, 39, 40, 41, 42
vAC = [list(range(24, 32)), list(range(229, 237)), [44, 45, 46, 47, 237, 238, 239, 43]]
vOO = 48
vT = 52
vPoll = 60
vCode = 61
vP, vQ, vS, vC, vOnes, vIdx = 64, 128, 192, 208, 224, 228
vAD, vDD, vPW, vXo = 4, 16, 20, 21
aO, aL, aK, aV = 0, 128, 144, 176
aX, aW = 128, 224
vAccQ, vAccG, aAccU = 128, 64, 0
vAccF, vAccS, vFr = 128, 64, 192
SLOT = [0, 8, 9, 1, 5, 2, 6, 7, 4, 3]
SLOT += SLOT[:7]
SLOT += [SLOT[7], SLOT[8], SLOT[9], SLOT[11], SLOT[13], SLOT[15]]
VOTE = 3 * 16384
one = lambda xs: [[x] for x in xs]
two = lambda xs: [xs[i:i+2] for i in range(0, len(xs), 2)]
def hreg(c):
    return ("a", 192 + 16*c) if c < 4 else (("a", 144 + 16*(c-4)) if c < 6 else ("v", 240))

def srd(s, plo, off, size):
    if off is None: L = [f"s_mov_b32 s{s}, s{plo}", f"s_mov_b32 s{s+1}, s{plo+1}"]
    else: L = [f"s_add_u32 s{s}, s{plo}, {off}", f"s_addc_u32 s{s+1}, s{plo+1}, 0"]
    return L + [f"s_mov_b32 s{s+2}, {size}", f"s_mov_b32 s{s+3}, 0x20000"]
def mfma(d, a, b, c): return f"v_mfma_f32_16x16x32_bf16 {d}, {a}, {b}, {c}"
def flat(gs): return [x for g in gs for x in g]
def isvm(x): return x.startswith("buffer_")
def off(n): return f" offset:{n}" if n else ""

def stamp(n):
    if not cfg.stamps: return []
    return ["s_memtime s[92:93]", "s_memrealtime s[94:95]", "s_waitcnt lgkmcnt(0)",
            f"v_writelane_b32 v62, s92, {n}", f"v_writelane_b32 v63, s94, {n}"]
def stamp_flush():
    if not cfg.stamps: return []
    L = ["s_waitcnt vmcnt(0)"] + stamp(31)
    L += ["s_lshl_b32 s92, s2, 11", f"s_lshl_b32 s93, s{sWave}, 9", "s_add_u32 s92, s92, s93", f"s_add_u32 s92, s92, {DIAG_OFF}"]
    L += srd(96, pWS, None, WS_SIZE)
    L += ["v_lshlrev_b32 v60, 3, v0", "buffer_store_dwordx2 v[62:63], v60, s[96:99], s92 offen"]
    return L

class Em:
    def __init__(self): self.L = []; self.ops = []
    def __call__(self, xs, tag=None):
        for x in xs:
            self.L.append(x)
            if isvm(x) and ";nt" not in x and tag != "sig": self.ops.append(tag)
    def need(self, *tags):
        last = -1
        for i, t in enumerate(self.ops):
            if t in tags: last = i
        assert last >= 0, tags
        return min(63, len(self.ops) - 1 - last)
    def take(self):
        r = self.L; self.L = []; return r

uid = [0]
def post(off_sgpr, imm=0, mask=None):
    so = "0" if off_sgpr is None else f"s{off_sgpr}"
    return [f"v_mov_b32 v{vPoll}, s{sTag}", f"buffer_store_dword v{vPoll}, v{vLane0 if mask is None else mask}, {S(sFlag,4)}, {so} offen{off(imm)} sc1"]
def spin(voff, off_sgpr, imm=0):
    uid[0] += 1; u = uid[0]
    if cfg.spinsleep:
        return [f"s_mov_b32 s{sCnt}, 0x40000", f"L_spin{u}:",
            f"buffer_load_dword v{vPoll}, v{voff}, {S(sFlag,4)}, s{off_sgpr} offen{off(imm)} sc1", f"s_sub_u32 s{sCnt}, s{sCnt}, 1", "s_waitcnt vmcnt(0)",
            f"s_cbranch_scc1 L_spin_done{u}", f"v_cmp_ne_u32 vcc, s{sTag}, v{vPoll}", f"s_cbranch_vccz L_spin_done{u}", f"s_sleep {cfg.spinsleep}", f"s_branch L_spin{u}", f"L_spin_done{u}:"]
    return [f"s_mov_b32 s{sCnt}, 0x40000", f"L_spin{u}:",
            f"buffer_load_dword v{vPoll}, v{voff}, {S(sFlag,4)}, s{off_sgpr} offen{off(imm)} sc1", f"s_sub_u32 s{sCnt}, s{sCnt}, 1", "s_waitcnt vmcnt(0)",
            f"s_cbranch_scc1 L_spin_done{u}", f"v_cmp_ne_u32 vcc, s{sTag}, v{vPoll}", f"s_cbranch_vccnz L_spin{u}", f"L_spin_done{u}:"]

def setup(e):
    T = vT
    e(["s_cmp_ge_u32 s2, 256", "s_cbranch_scc1 L_end"] + stamp(0))
    e([f"s_load_dwordx2 {S(pX,2)}, s[0:1], 0", f"s_load_dwordx8 {S(pK,8)}, s[0:1], 8",
       f"s_load_dwordx4 {S(pW1,4)}, s[0:1], 48", f"s_load_dwordx8 {S(pW2,8)}, s[0:1], 64"])
    if not cfg.notouch:
        e([f"s_getpc_b64 {S(sCode,2)}", "L_pc:", f"s_mov_b32 s{sCode+2}, L_end-L_pc", f"s_mov_b32 s{sCode+3}, 0x20000",
           f"s_bfe_u32 s{sT0}, s2, {hx((3 << 16) | 3)}", f"s_lshl_b32 s{sCodeOff}, s{sT0}, 7", f"v_lshlrev_b32 v{vCode}, 10, v0",
           f"buffer_load_dword v{vPoll}, v{vCode}, {S(sCode,4)}, s{sCodeOff} offen"], "code")
    e(([f"s_and_b32 s{sXcd}, s2, 7", f"s_lshr_b32 s{sT0}, s2, 3"] if not cfg.badmap else [f"s_lshr_b32 s{sXcd}, s2, 5", f"s_and_b32 s{sT0}, s2, 31"]) + [f"s_and_b32 s{sHl}, s{sT0}, 3", f"s_lshr_b32 s{sB}, s{sT0}, 2",
       f"s_lshl_b32 s{sHead}, s{sXcd}, 2", f"s_add_u32 s{sHead}, s{sHead}, s{sHl}",
       f"v_lshrrev_b32 v{T}, 5, v0", f"v_and_b32 v{T+1}, 31, v0", f"v_lshlrev_b32 v{T+2}, 10, v{T}", f"v_lshl_add_u32 v{T+6}, v{T+1}, 4, v{T+2}",
       f"s_lshl_b32 s{sT0}, s{sB}, 18", f"s_lshl_b32 s{sT1}, s{sHead}, 13", f"s_add_u32 s{sT1}, s{sT1}, s{sT0}",
       f"s_add_u32 s{sT2}, s{sT0}, {F_OFF}",
       f"v_lshlrev_b32 v{T+2}, 4, v{T}", f"v_lshl_add_u32 v{T+7}, v{T+1}, 7, v{T+2}", f"v_add_u32 v{T+7}, 131072, v{T+7}",
       f"v_lshlrev_b32 v{T+4}, 24, v{T}", f"v_lshl_add_u32 v{T+4}, v{T+1}, 2, v{T+4}",
       "v_lshrrev_b32 v1, 6, v0", "v_and_b32 v0, 63, v0", f"v_readfirstlane_b32 s{sWave}, v1",
       "v_and_b32 v2, 15, v0", "v_lshrrev_b32 v3, 4, v0",
       "s_waitcnt lgkmcnt(0)"] + stamp(1))
    e(srd(sK, pX, f"s{sT1}", 8192))
    X, F = 64, 96
    for i in range(2): e([f"buffer_load_dwordx4 {V(X+4*i,4)}, v{T+6}, {S(sK,4)}, 0 offen{off(512*i)}"], "x")
    e(srd(sFlag, pWS, f"s{sT2}", 262144))
    e([f"buffer_load_dword v{T+5}, off, {S(sFlag,4)}, 0 sc1"], "nonce")
    e(srd(sXN, pWS, f"s{sT0}", 262144))
    e([f"s_mul_i32 s{sJ}, s{sXcd}, 3", f"s_add_u32 s{sJ}, s{sJ}, s{sHl}",
       f"s_lshr_b32 s{sSplit}, s{sXcd}, 1", f"s_add_u32 s{sT0}, s{sSplit}, 24",
       f"s_cmp_eq_u32 s{sHl}, 3", f"s_cselect_b32 s{sJ}, s{sT0}, s{sJ}",
       f"s_lshr_b32 s{sT0}, s{sB}, 2", f"s_xor_b32 s{sT0}, s{sT0}, s{sXcd}", f"s_and_b32 s{sT0}, s{sT0}, 1",
       f"s_cmp_eq_u32 s{sHl}, 3", f"s_cselect_b32 s{sInact}, s{sT0}, 0"])
    e([f"v_lshlrev_b32 v{T}, 2, v3", f"v_xor_b32 v{T}, v{T}, v2", f"v_lshlrev_b32 v{T}, 4, v{T}",
       f"v_lshl_add_u32 v{T+1}, v1, 4, v3", f"v_lshl_add_u32 v{vDWQ}, v{T+1}, 13, v{T}"])
    for j in range(1, 4): e([f"v_add_u32 v{vDWQ+j}, {j*(4*8192-1024)}, v{vDWQ}"])
    e([f"v_lshrrev_b32 v{T}, 3, v0", f"v_and_b32 v{T+1}, 7, v0",
       f"v_lshl_add_u32 v{T+3}, v1, 4, v{T}", f"v_lshlrev_b32 v{T+6}, 8, v{T+3}", f"v_lshl_add_u32 v{T+6}, v{T+1}, 4, v{T+6}",
       f"v_and_b32 v{T+2}, 2, v{T}", f"v_xor_b32 v{T+1}, v{T+1}, v{T+2}", f"v_mul_u32_u24 v{T}, 3584, v{T+3}",
       f"v_lshl_add_u32 v{vDW13}, v{T+1}, 4, v{T}",
       f"v_xor_b32 v{T+1}, 4, v{T+1}", f"v_lshl_add_u32 v{vDW13+1}, v{T+1}, 4, v{T}",
       f"v_add_u32 v{vDW13+1}, {8*3584-1024}, v{vDW13+1}"])
    e([f"s_lshl_b32 s{sM0A}, s{sWave}, 12", f"s_lshl_b32 s{sM0B}, s{sWave}, 11",
       f"s_add_u32 s{sM0B}, s{sM0B}, 65536", f"s_add_u32 s{sM0V}, s{sM0A}, 65536"])
    e([f"s_lshl_b32 s{sT0}, s{sHead}, 8"] + srd(sWQ, pWQ, f"s{sT0}", 4194304) + [f"s_sub_u32 s{sWQ+2}, s{sWQ+2}, s{sT0}"])
    e([f"s_lshl_b32 s{sT0}, s{sJ}, 7"] + srd(sW1, pW1, f"s{sT0}", 1835008) + srd(sW3, pW3, f"s{sT0}", 1835008))
    e([f"s_sub_u32 s{sW1+2}, s{sW1+2}, s{sT0}", f"s_cmp_eq_u32 s{sInact}, 1", f"s_cselect_b32 s{sW1+2}, 0, s{sW1+2}", f"s_mov_b32 s{sW3+2}, s{sW1+2}"])
    e(flat(dma_w(0)), ("it", 0))
    e([f"s_lshr_b32 s{sT0}, s{sHead}, 1", f"s_lshl_b32 s{sT0}, s{sT0}, 14", f"s_and_b32 s{sT1}, s{sHead}, 1", f"s_lshl_b32 s{sT1}, s{sT1}, 7",
       f"s_add_u32 s{sSoff2}, s{sT0}, s{sT1}", f"v_lshlrev_b32 v{T}, 4, v0", f"s_add_u32 s{sT0}, s{sM0B}, 65536", f"v_add_u32 v{T+3}, s{sT0}, v{T}",
       f"s_mov_b32 s{sT2}, 0xffff0000"])
    n0 = e.need("x")
    for i in range(2):
        e([f"s_waitcnt vmcnt({n0 + 1 - i})"])
        for j in range(4):
            r = 4*i + j
            e([f"v_lshlrev_b32 v{F+2*r}, 16, v{X+r}", f"v_and_b32 v{F+2*r+1}, s{sT2}, v{X+r}"])
    M, Vr, U = 80, 84, 88
    e([f"v_pk_add_f32 {V(M,2)}, {V(F,2)}, {V(F+2,2)}", f"v_pk_add_f32 {V(M+2,2)}, {V(F+4,2)}, {V(F+6,2)}"])
    for p in range(4, 8): e([f"v_pk_add_f32 {V(M+2*(p&1),2)}, {V(M+2*(p&1),2)}, {V(F+2*p,2)}"])
    def red(r):
        o = [f"v_pk_add_f32 {V(r,2)}, {V(r,2)}, {V(r+2,2)}", f"v_add_f32 v{r}, v{r}, v{r+1}"]
        for sh in (1, 2, 4, 8): o += ["s_nop 1", f"v_add_f32_dpp v{r}, v{r}, v{r} row_ror:{sh} row_mask:0xf bank_mask:0xf"]
        o += [f"v_mov_b32 v{r+1}, v{r}", "s_nop 1", f"v_permlane16_swap_b32 v{r}, v{r+1}", f"v_add_f32 v{r}, v{r}, v{r+1}"]
        return o + [f"v_mul_f32 v{r}, {hx(f2u(1/512.))}, v{r}"]
    e(red(M) + [f"v_mov_b32 v{M+1}, v{M}"])
    for p in range(8):
        u = U + 2*(p & 1); vr = V(Vr+2*(p&1),2)
        e([f"v_pk_add_f32 {V(u,2)}, {V(F+2*p,2)}, {V(M,2)} neg_lo:[0,1] neg_hi:[0,1]",
           f"v_pk_fma_f32 {vr}, {V(u,2)}, {V(u,2)}, {vr}" if p > 1 else f"v_pk_mul_f32 {vr}, {V(u,2)}, {V(u,2)}"])
    e(red(Vr))
    e([f"v_cvt_pk_bf16_f32 v{M}, v{M}, v{Vr}", f"v_and_b32 v{Vr}, s{sT2}, v{M}", f"v_lshlrev_b32 v{M}, 16, v{M}",
       f"v_add_f32 v{Vr}, {hx(f2u(1e-5))}, v{Vr}", f"v_cvt_pk_bf16_f32 v{Vr}, v{Vr}, v{Vr}", f"v_and_b32 v{Vr}, s{sT2}, v{Vr}",
       f"v_sqrt_f32 v{Vr}, v{Vr}", f"v_mov_b32 v{M+1}, v{M}", f"v_cvt_pk_bf16_f32 v{Vr}, v{Vr}, v{Vr}", f"v_and_b32 v{Vr}, s{sT2}, v{Vr}",
       f"v_rcp_f32 v{Vr}, v{Vr}", "s_nop 0", f"v_mov_b32 v{Vr+1}, v{Vr}"])
    for p in range(8):
        a = F + 2*p
        e([f"v_pk_add_f32 {V(a,2)}, {V(a,2)}, {V(M,2)} neg_lo:[0,1] neg_hi:[0,1]", f"v_cvt_pk_bf16_f32 v{U}, v{a}, v{a+1}",
           f"v_lshlrev_b32 v{a}, 16, v{U}", f"v_and_b32 v{a+1}, s{sT2}, v{U}",
           f"v_pk_mul_f32 {V(a,2)}, {V(a,2)}, {V(Vr,2)}", f"v_cvt_pk_bf16_f32 v{X+p}, v{a}, v{a+1}"])
        if p % 4 == 3: e([f"ds_write_b128 v{T+7}, {V(X+p-3,4)}{off(4096*(p >> 2))}"])
    e(["s_waitcnt lgkmcnt(0)", "s_barrier", f"ds_read_b128 {V(X+8,4)}, v{T+3}", f"ds_read_b128 {V(X+12,4)}, v{T+3} offset:1024",
       f"s_lshl_b32 s{sT1}, s{sHead}, 7", f"s_add_u32 s{sT1}, s{sT1}, {FX}"])
    for i in range(2): e([f"s_waitcnt lgkmcnt({1-i})", f"buffer_store_dwordx4 {V(X+8+4*i,4)}, v{T+6}, {S(sXN,4)}, s{sSoff2} offen{off(2048*i)} sc1"], "xn")
    e(stamp(2))
    e([f"v_lshlrev_b32 v{T}, 4, v0", f"v_lshl_add_u32 v{vOX}, v1, 16, v{T}"])
    for q in range(1, 4): e([f"v_add_u32 v{vOX+q}, {q*16384}, v{vOX}"])
    e(["s_waitcnt vmcnt(0)", f"v_readfirstlane_b32 s{sTag}, v{T+5}", "s_barrier",
       f"s_mul_i32 s{sTag}, s{sTag}, 0x9e3779b5", f"s_add_u32 s{sTag}, s{sTag}, 0x7f4a7c15"] + stamp(3))
    e(post(sT1, 0, T+4), "sig")
    e([f"v_lshrrev_b32 v{T}, 2, v2", f"v_and_b32 v{T+1}, 3, v2",
       f"v_lshl_add_u32 v{T+2}, v3, 3, v{T}", f"v_lshlrev_b32 v{T+3}, 8, v{T+2}", f"v_lshl_add_u32 v{T+3}, v{T+1}, 4, v{T+3}"])
    for ds in range(4): e([f"v_xor_b32 v{T+5}, {ds}, v{T}", f"v_lshl_add_u32 v{vAWQ+ds}, v{T+5}, 6, v{T+3}"])
    e([f"v_lshrrev_b32 v{T+6}, 3, v2", f"v_and_b32 v{T+5}, 1, v3", f"v_lshl_add_u32 v{T+6}, v{T+5}, 1, v{T+6}",
       f"v_lshlrev_b32 v{T+3}, 7, v{T+2}", f"v_lshl_add_u32 v{T+3}, v{T+1}, 3, v{T+3}", f"v_add_u32 v{T+3}, 65536, v{T+3}"])
    for nt in range(4): e([f"v_xor_b32 v{T+5}, {nt}, v{T+6}", f"v_lshl_add_u32 v{vAW13+nt}, v{T+5}, 5, v{T+3}"])
    e(rd_w(0) + rd_w(1))
    e([f"v_and_b32 v{T+5}, 7, v0", f"v_lshlrev_b32 v{T+5}, 7, v{T+5}", f"s_lshl_b32 s{sT1}, s{sWave}, 10", f"s_add_u32 s{sT1}, s{sT1}, {FX}"])
    e(spin(T+5, sT1), "spin")
    e(stamp(4))

def setupB():
    T = vT
    g = two([f"s_and_b32 s{sRh}, s{sXcd}, 1", f"s_mov_b32 s{sCb}, s{sHl}", f"s_mov_b32 s{sRetry}, 0", f"s_lshl_b32 s{sT0}, s{sHead}, 19"])
    g += two(srd(sK, pK, f"s{sT0}", 524288) + srd(sV, pV, f"s{sT0}", 524288))
    g += two([f"s_mul_i32 s{sT0}, s{sB}, {16*57344}", f"s_lshl_b32 s{sT1}, s{sJ}, 11", f"s_add_u32 s{sT0}, s{sT0}, s{sT1}", f"s_add_u32 s{sT0}, s{sT0}, {H_OFF}"])
    g += two(srd(sH, pWS, f"s{sT0}", 16*57344))
    g += [[f"s_sub_u32 s{sH+2}, s{sH+2}, s{sT1}"], [f"s_cmp_eq_u32 s{sInact}, 1", f"s_cselect_b32 s{sH+2}, 0, s{sH+2}"]]
    g += two([f"s_lshl_b32 s{sT0}, s{sB}, 21", f"s_lshl_b32 s{sT1}, s{sHead}, 12", f"s_add_u32 s{sT0}, s{sT0}, s{sT1}", f"s_add_u32 s{sT0}, s{sT0}, {O_OFF}"])
    g += two(srd(sO, pWS, f"s{sT0}", 2097152) + [f"s_sub_u32 s{sO+2}, s{sO+2}, s{sT1}"])
    L = [f"v_xor_b32 v{T+3}, v2, v3", f"v_lshlrev_b32 v{T+4}, 8, v2"]
    for ds in range(4): L += [f"v_xor_b32 v{T+5}, {4*ds}, v{T+3}", f"v_lshl_add_u32 v{vAK+ds}, v{T+5}, 4, v{T+4}"]
    L += [f"v_lshl_add_u32 v{T+2}, v3, 2, v{T}", f"v_and_b32 v{T+3}, 7, v{T+2}",
          f"v_lshlrev_b32 v{T+4}, 8, v{T+2}", f"v_lshl_add_u32 v{T+4}, v{T+1}, 3, v{T+4}", f"v_add_u32 v{T+4}, 65536, v{T+4}"]
    for dt in range(8): L += [f"v_xor_b32 v{T+5}, {dt}, v{T+3}", f"v_lshl_add_u32 v{vAV+dt}, v{T+5}, 5, v{T+4}"]
    L += [f"v_lshlrev_b32 v{T+3}, 12, v1", f"v_lshl_add_u32 v{T+3}, v3, 8, v{T+3}", f"v_xor_b32 v{T+4}, v2, v3"]
    for j in range(4): L += [f"v_xor_b32 v{T+5}, {4*j}, v{T+4}", f"v_lshl_add_u32 v{vDK+j}, v{T+5}, 4, v{T+3}"]
    L += [f"v_lshlrev_b32 v{T+4}, 1, v3", f"v_xor_b32 v{T+4}, v2, v{T+4}"]
    for j in range(2): L += [f"v_xor_b32 v{T+5}, {8*j}, v{T+4}", f"v_lshl_add_u32 v{vDV+j}, v{T+5}, 4, v{T+3}"]
    L += [f"s_mul_i32 s{sT0}, s{sWave}, {4*57344}", f"v_lshlrev_b32 v{T+3}, 4, v0", f"v_add_u32 v{vOH}, s{sT0}, v{T+3}",
          f"v_lshl_add_u32 v{vOO}, v1, 19, v{T+3}"]
    for q in range(1, 4): L += [f"v_add_u32 v{vOH+q}, {q*57344}, v{vOH}", f"v_add_u32 v{vOO+q}, {q*131072}, v{vOO}"]
    L += [f"s_mul_i32 s{sT0}, s{sWave}, {2*57344}", f"v_add_u32 v{vBH}, s{sT0}, v{T+3}", f"v_add_u32 v{vBH+1}, 57344, v{vBH}",
          f"s_mov_b32 s{sQS}, {hx(f2u(QSCALE))}", f"s_mov_b32 s{sQS+1}, {hx(f2u(QSCALE))}"]
    return [(x, None) for x in g + two(L)]

def setupC():
    T = vT
    g = two([f"s_lshl_b32 s{sT0}, s{sCb}, 8", f"s_mul_i32 s{sT1}, s{sSplit}, {448*1024}"]) + [[f"s_add_u32 s{sT1}, s{sT1}, s{sT0}"]]
    g += two(srd(sW2, pW2, f"s{sT1}", 1835008) + [f"s_sub_u32 s{sW2+2}, s{sW2+2}, s{sT1}"])
    L = [f"v_lshl_add_u32 v{T}, v1, 4, v3", f"v_lshlrev_b32 v{T}, 10, v{T}", f"v_lshlrev_b32 v{T+1}, 1, v3", f"v_xor_b32 v{T+1}, v2, v{T+1}"]
    for j in range(4):
        L += [f"v_xor_b32 v{T+2}, {8*(j&1)}, v{T+1}", f"v_lshl_add_u32 v{vDC+j}, v{T+2}, 4, v{T}"] + ([f"v_add_u32 v{vDC+j}, {3072*j}, v{vDC+j}"] if j else [])
    g += two(L)
    g += two([f"s_lshl_b32 s{sT1}, s{sSplit}, 20", f"s_add_u32 s{sT1}, s{sT1}, s{sT0}"])
    g += two(srd(sWO, pWO, f"s{sT1}", 1048576) + [f"s_sub_u32 s{sWO+2}, s{sWO+2}, s{sT0}"])
    g += two([f"s_lshl_b32 s{sT2}, s{sB}, 1", f"s_add_u32 s{sT2}, s{sT2}, s{sRh}",
              f"s_mul_i32 s{sT0}, s{sT2}, {8*57344}", f"s_mul_i32 s{sT1}, s{sSplit}, 14336", f"s_add_u32 s{sT0}, s{sT0}, s{sT1}", f"s_add_u32 s{sT0}, s{sT0}, {H_OFF}"])
    g += two(srd(sHr, pWS, f"s{sT0}", 8*57344))
    g += two([f"s_lshl_b32 s{sT0}, s{sT2}, 20", f"s_lshl_b32 s{sT1}, s{sSplit}, 15", f"s_add_u32 s{sT0}, s{sT0}, s{sT1}", f"s_add_u32 s{sT0}, s{sT0}, {O_OFF}"])
    g += two(srd(sOr, pWS, f"s{sT0}", 1048576))
    L = [f"s_lshr_b32 s{sColB}, s{sSplit}, 1", f"s_lshl_b32 s{sColB}, s{sColB}, 7",
         f"s_mul_i32 s{sT0}, s{sCb}, {2*131072 if cfg.rot else 0}", f"s_add_u32 s{sColB}, s{sColB}, s{sT0}", f"s_xor_b32 s{sColA}, s{sColB}, 128",
         f"v_and_b32 v{T}, 32, v0", f"v_lshlrev_b32 v{T}, 19, v{T}", f"v_lshl_add_u32 v{vLane0}, v0, 2, v{T}",
         f"v_lshlrev_b32 v{vL4}, 7, v0", f"v_lshl_add_u32 v{vThr0}, v1, 25, v{vLane0}",
         f"v_lshlrev_b32 v{T}, 4, v0", f"v_lshl_add_u32 v{vBO}, v1, 18, v{T}", f"v_add_u32 v{vBO+1}, 131072, v{vBO}",
         f"s_lshl_b32 s{sT0}, s{sB}, 15", f"s_sub_u32 s{sT0}, s{sT0}, {4*262144}",
         f"v_lshrrev_b32 v{T}, 1, v2", f"v_lshl_add_u32 v{T}, v1, 3, v{T}", f"v_lshlrev_b32 v{T}, 10, v{T}", f"v_and_b32 v{T+1}, 1, v0",
         f"v_lshl_add_u32 v{T}, v{T+1}, 7, v{T}", f"v_lshl_add_u32 v{T}, v3, 28, v{T}", f"v_add_u32 v{vTWo}, s{sT0}, v{T}",
         f"s_mul_i32 s{sT0}, s{sB}, {14*1024}", f"s_sub_u32 s{sT0}, s{sT0}, {4*112*1024}",
         f"v_mul_u32_u24 v{T}, 7, v1", f"v_add_u32 v{T}, v{T}, v0", f"v_and_b32 v{T+1}, 1, v{T}", f"v_lshrrev_b32 v{T}, 1, v{T}",
         f"v_lshlrev_b32 v{T}, 10, v{T}", f"v_lshl_add_u32 v{T}, v{T+1}, 7, v{T}", f"v_add_u32 v{T+1}, 1, v0", f"v_lshrrev_b32 v{T+1}, 3, v{T+1}",
         f"v_lshl_add_u32 v{T}, v{T+1}, 26, v{T}", f"v_add_u32 v{vTW2}, s{sT0}, v{T}",
         f"s_lshl_b32 s{sT0}, s{sHead}, 18", f"v_add_u32 v{T}, s{sT0}, v{vThr0}"]
    g += two(L)
    return [(x, None) for x in g] + [(post(None, 0, T), "sig")]

def dma_w(c):
    sl = (c & 3) * 16384
    g = [[f"s_add_u32 m0, s{sM0A}, {sl}", f"s_mov_b32 s{sSoff}, {c*524288}", f"buffer_load_dwordx4 v{vDWQ}, {S(sWQ,4)}, s{sSoff} offen lds"]]
    for j in range(1, 4): g.append([f"buffer_load_dwordx4 v{vDWQ+j}, {S(sWQ,4)}, s{sSoff} offen offset:{1024*j} lds"])
    g.append([f"s_add_u32 m0, s{sM0B}, {sl}", f"s_mov_b32 s{sSoff}, {c*229376}", f"buffer_load_dwordx4 v{vDW13}, {S(sW1,4)}, s{sSoff} offen lds"])
    g.append([f"buffer_load_dwordx4 v{vDW13+1}, {S(sW1,4)}, s{sSoff} offen offset:1024 lds"])
    g.append([f"s_add_u32 m0, s{sM0B}, {sl+8192}", "s_nop 0", f"buffer_load_dwordx4 v{vDW13}, {S(sW3,4)}, s{sSoff} offen lds"])
    g.append([f"buffer_load_dwordx4 v{vDW13+1}, {S(sW3,4)}, s{sSoff} offen offset:1024 lds"])
    return g
def ld_x(c):
    g = []
    for qs in range(4):
        for ks in range(2):
            pre = [f"s_movk_i32 s{sSoff2}, {c*2048}"] if (qs == 0 and ks == 0) else []
            g.append(pre + [f"buffer_load_dwordx4 {A(aX + 32*(c%3) + 8*qs + 4*ks, 4)}, v{vOX+qs}, {S(sXN,4)}, s{sSoff2} offen{off(1024*ks)} sc1"])
    return g
KVM = lambda: ["", " sc1", " nt", " sc0 sc1", " sc0"][cfg.kvmod]
def dma_k(n, soff):
    return [[f"s_add_u32 m0, s{sM0A}, {(n & 3) * 16384}"]] + [[f"buffer_load_dwordx4 v{vDK+j}, {S(sK,4)}, {soff} offen{off(1024*j)}{KVM()} lds"] for j in range(4)]
def dma_v(n, soff):
    return [[f"s_add_u32 m0, s{sM0V}, {(n & 3) * 16384}"]] + [[f"buffer_load_dwordx4 v{vDV+(j&1)}, {S(sV,4)}, {soff} offen{off(1024*j)}{KVM()} lds"] for j in range(4)]
def dma_c(n):
    m0 = f"s_add_u32 m0, s{sM0A}, {SLOT[n] * 16384}"
    if n < 7:
        return [[m0, f"s_mov_b32 s{sSoff}, {n*65536}"]] + [[f"buffer_load_dwordx4 v{vDC+j}, {S(sW2,4)}, s{sSoff} offen{off(1024*j)} lds"] for j in range(4)]
    c = (n - 7) >> 1
    return [[m0, f"s_xor_b32 s{sSoff}, s{sColA if n & 1 else sColB}, {c*131072}"]] + \
           [[f"buffer_load_dwordx4 v{vDD+j}, {S(sWO,4)}, s{sSoff} offen{off(1024*j)} lds"] for j in range(4)]
def ld_b(c):
    k, r = hreg(c); g = []
    for ql in range(2):
        for ks in range(2):
            pre = [f"s_movk_i32 s{sSoff2}, {c*2048}"] if ql + ks == 0 else []
            g.append(pre + [f"buffer_load_dwordx4 {R(k, r + 8*ql + 4*ks, 4)}, v{vBH+ql}, {S(sHr,4)}, s{sSoff2} offen{off(1024*ks)} sc1"])
    return g
def ld_o(c):
    g = []
    for ql in range(2):
        for ks in range(4):
            pre = [f"s_xor_b32 s{sSoff2}, s{sRot}, {c*4096}"] if ql + ks == 0 else []
            g.append(pre + [f"buffer_load_dwordx4 {A(32*c + 16*ql + 4*ks, 4)}, v{vBO+ql}, {S(sOr,4)}, s{sSoff2} offen{off(1024*ks)} sc1"])
    return g
def rd_w(gb):
    c, nt = gb >> 4, gb & 15
    sl = (c & 3) * 16384; buf = aW + 8 * (gb % 3); o = []
    for ks in range(2):
        for hf in range(2):
            d = A(buf + 4*ks + 2*hf, 2)
            if nt < 8: o.append(f"ds_read_b64_tr_b16 {d}, v{vAWQ + (nt>>1)} offset:{sl + ks*8192 + hf*1024 + 8*(nt&1)}")
            else: o.append(f"ds_read_b64_tr_b16 {d}, v{vAW13 + (nt&3)} offset:{sl + ((nt-8)>>2)*8192 + ks*4096 + hf*512}")
    return o

def accA(nt, qs):
    if nt < 8: return V(vAccQ + 32*qs + 4*nt, 4)
    if nt < 12: return V(vAccG + 16*qs + 4*(nt-8), 4)
    return A(aAccU + 16*qs + 4*(nt-12), 4)
def phaseA(e):
    e(flat(ld_x(0)), ("it", 0)); e(flat(dma_w(1)), ("it", 1)); e(flat(ld_x(1)), ("it", 1))
    e([f"s_waitcnt vmcnt({e.need(('it', 0))}) lgkmcnt(4)"] + stamp(5))
    pend = setupB()
    for c in range(8):
        it = c + 2
        if it < 8: G = [(g, ("it", it)) for g in dma_w(it) + ld_x(it)]
        elif it == 8:
            assert not pend
            pend = setupC()
            g = dma_k(0, "0"); G = [(x, ("it", it)) for x in [g[0] + ["s_nop 0"] + g[1]] + g[2:]] + [([], None)] * 4
            for n in (1, 2):
                g = dma_c(n); G += [(x, ("c", n)) for x in [g[0] + g[1]] + g[2:]]
        else:
            g = dma_k(1, f"s{sTile}"); G = [[f"s_movk_i32 s{sTile}, 16384"] + g[0] + [f"s_movk_i32 s{sTile+1}, 0"] + g[1]] + g[2:]
            g = dma_v(1, "0"); G += [g[0] + ["s_nop 0"] + g[1]] + g[2:]
            G = [(x, ("it", it)) for x in G]
        for nt in range(16):
            gb = 16*c + nt
            rds = rd_w(gb + 2) if gb + 2 < 128 else []
            k = 0
            for qs in range(4):
                d = accA(nt, qs)
                for kk in range(2):
                    ks = kk if qs % 2 == 0 else 1 - kk
                    e([mfma(d, A(aW + 8*(gb%3) + 4*ks, 4), A(aX + 32*(c%3) + 8*qs + 4*ks, 4), "0" if (c == 0 and kk == 0) else d)])
                    if k < 4 and rds: e([rds[k]])
                    if k == 5 and nt < len(G): e(*G[nt])
                    if k in (4, 6) and pend: e(*pend.pop(0))
                    if k == 7:
                        if nt == 13 and c < 7: e([f"s_waitcnt vmcnt({e.need(('it', c+1))}) lgkmcnt(4)", "s_barrier"])
                        elif gb + 2 < 128: e(["s_waitcnt lgkmcnt(4)"])
                        elif gb + 1 < 128: e(["s_waitcnt lgkmcnt(0)"])
                    k += 1
    assert not pend
    e(stamp(6))
    e([f"s_waitcnt vmcnt({e.need(('it', 8))})", "s_barrier"])
    e([f"ds_read_b128 {A(aK + 4*ds, 4)}, v{vAK+ds}" for ds in range(4)])
    for qs in range(4):
        for ds in range(4):
            r = vAccQ + 32*qs + 8*ds; q = vQ + 16*qs + 4*ds
            for x in range(0, 8, 2): e([f"v_pk_mul_f32 {V(r+x,2)}, {V(r+x,2)}, {S(sQS,2)}"])
            for x in range(0, 8, 2): e([f"v_cvt_pk_bf16_f32 v{q+x//2}, v{r+x}, v{r+x+1}"])
    e([f"s_mov_b32 s{sQS}, {hx(f2u(-LOG2E))}", f"s_mov_b32 s{sQS+1}, {hx(f2u(-LOG2E))}", "s_waitcnt lgkmcnt(0)"])
    U_, E_ = 208, 240
    for qs in range(4):
        d = V(vS + 4*qs, 4)
        for ds in range(4):
            e([mfma(d, A(aK + 4*ds, 4), V(vQ + 16*qs + 4*ds, 4), "0" if ds == 0 else d)])
            x = 8*qs + 2*ds
            e([f"v_accvgpr_read_b32 v{U_+x}, a{aAccU+x}", f"v_accvgpr_read_b32 v{U_+x+1}, a{aAccU+x+1}"])
    for qs in range(4):
        G_ = vAccG + 16*qs; Uq = U_ + 16*(qs & 1)
        if qs >= 2:
            for x in range(16): e([f"v_accvgpr_read_b32 v{Uq+x}, a{aAccU + 16*qs + x}"])
        for x in range(0, 16, 2): e([f"v_pk_mul_f32 {V(E_+x,2)}, {V(G_+x,2)}, {S(sQS,2)}"])
        for x in range(16): e([f"v_exp_f32 v{E_+x}, v{E_+x}"])
        for x in range(0, 16, 2): e([f"v_pk_mul_f32 {V(G_+x,2)}, {V(G_+x,2)}, {V(Uq+x,2)}"])
        for x in range(0, 16, 2): e([f"v_pk_add_f32 {V(E_+x,2)}, {V(E_+x,2)}, 1.0 op_sel_hi:[1,0]"])
        for x in range(16): e([f"v_rcp_f32 v{E_+x}, v{E_+x}"])
        for x in range(0, 16, 2): e([f"v_pk_mul_f32 {V(G_+x,2)}, {V(G_+x,2)}, {V(E_+x,2)}"])
        for x in range(0, 16, 2): e([f"v_cvt_pk_bf16_f32 v{G_+x//2}, v{G_+x}, v{G_+x+1}"])
        for pr in range(2): e([f"buffer_store_dwordx4 {V(G_+4*pr,4)}, v{vOH+qs}, {S(sH,4)}, 0 offen{off(1024*pr)} sc1"], "h")
    T = vT
    for qs in range(4):
        s = vS + 4*qs
        e([f"v_max3_f32 v{T+qs}, v{s}, v{s+1}, v{s+2}", f"v_max_f32 v{T+qs}, v{T+qs}, v{s+3}"])
    for r in range(4): e([f"v_mov_b32 v{vOnes+r}, 0x3f803f80"])
    e([f"v_and_b32 v{T+4}, 1, v0", f"v_mul_u32_u24 v{T+4}, 0xaaaa, v{T+4}", f"v_add_u32 v{vIdx}, 0x4444, v{T+4}"])

def max_to_c(e):
    T = vT
    for sw in ("v_permlane32_swap_b32", "v_permlane16_swap_b32"):
        for qs in range(4): e([f"v_mov_b32 v{T+4+qs}, v{T+qs}"])
        e(["s_nop 0"])
        for qs in range(4): e([f"{sw} v{T+qs}, v{T+4+qs}"])
        for qs in range(4): e([f"v_max_f32 v{T+qs}, v{T+qs}, v{T+4+qs}"])
    for qs in range(4):
        for r in range(4): e([f"v_sub_f32 v{vC+4*qs+r}, 0, v{T+qs}"])
    for r in range(16): e([f"v_accvgpr_write_b32 a{aL+r}, 0"])
    e([f"ds_read_b128 {A(aK + 16, 4)}, v{vAK} offset:4096"])

def attn_iter(e, i):
    qk = i + 1 < NT; pv = i >= 0
    Pn = vP + 32 * ((i + 1) & 1); Pc = vP + 32 * (i & 1)
    n = i + 3
    free = [(b, g) for b in range(16) for g in ((5, 7) if b % 2 == 0 else (1, 5, 7)) if (b, g) != (11, 1)]
    extra = {}
    def put(groups, tag, slots):
        assert len(groups) <= len(slots), (i, len(groups), len(slots))
        for g, sl in zip(groups, slots): extra.setdefault(sl, []).append((g, tag))
    kslots = [(0, 5), (0, 7), (1, 5), (2, 5), (3, 5), (4, 5)]
    vslots = [(4, 7), (5, 1), (5, 5), (6, 5), (7, 5), (8, 5)]
    if n < NT: put([[f"s_add_u32 s{sTile}, s{sTile}, 16384"]] + dma_k(n, f"s{sTile}"), ("it", 8 + n), kslots)
    if n - 1 < NT: put([[f"s_add_u32 s{sTile+1}, s{sTile+1}, 16384"]] + dma_v(n, f"s{sTile+1}"), ("it", 8 + n), vslots)
    if i == 0:
        put([[f"s_lshl_b32 s{sT1}, s{sHead}, 7", f"s_add_u32 s{sT1}, s{sT1}, {FH}"], post(sT1, 0, vThr0)], "sig", [(11, 5), (11, 7)])
        L = [f"s_lshl_b32 s{sT0}, s{sSplit}, 6"]
        for nt in range(8):
            L += [f"v_xor_b32 v{vAC[1][nt]}, s{sT0}, v{vAV+nt}", f"v_subrev_u32 v{vAC[0][nt]}, 65536, v{vAC[1][nt]}", f"v_add_u32 v{vAC[2][nt]}, 65536, v{vAC[1][nt]}"]
        put(one(L), None, [x for x in free if x not in extra])
    if 1 <= i <= 28 and not cfg.notouch:
        if i % 4 == 1: put([[f"buffer_load_dword v{vT+5}, v{vCode}, {S(sCode,4)}, s{sCodeOff} offen"]], "touch", [(9, 5)])
        if i % 4 == 2: put([[f"v_add_u32 v{vTWo}, 262144, v{vTWo}"], [f"buffer_load_dword v{vT+6}, v{vTWo}, {S(sWO,4)}, 0 offen"]], "touch", [(9, 1), (9, 5)])
        if i % 4 == 3: put([[f"v_add_u32 v{vTW2}, {112*1024}, v{vTW2}"], [f"buffer_load_dword v{vT+7}, v{vTW2}, {S(sW2,4)}, 0 offen"]], "touch", [(9, 1), (9, 5)])
    if i == 29:
        put([[f"v_and_b32 v{vT+1}, 4095, v{vL4}", f"s_movk_i32 s{sT1}, {FH}", f"buffer_load_dword v{vPoll}, v{vT+1}, {S(sFlag,4)}, s{sT1} offen sc1"]], "poll", [(0, 5)])
        put(dma_c(0), ("c", 0), kslots[1:])
        put([[f"v_cmp_ne_u32 vcc, s{sTag}, v{vPoll}"], ["s_cbranch_vccnz L_hwait", "L_hok:"]], None, [(11, 5), (11, 7)])
        put(ld_b(0), ("b", 0), [(12, 5), (13, 1), (13, 5), (14, 5)]); put(ld_b(1)[:2], ("b", 1), [(15, 1), (15, 5)])
    if i == 30:
        put(ld_b(1)[2:], ("b", 1), [(0, 5), (1, 1)])
        put(dma_c(3), ("c", 3), kslots[1:]); put(dma_c(4), ("c", 4), vslots[1:])
        put(ld_b(2), ("b", 2), [(2, 7), (3, 7), (6, 7), (7, 7)]); put(ld_b(3), ("b", 3), [(9, 1), (9, 5), (10, 5), (11, 5)])
        put(ld_b(6), ("b", 6), [(12, 5), (13, 5), (14, 5), (15, 5)])
    for b in range(16):
        kt, qs = b >> 2, b & 3
        M = []
        if qk:
            d = V(vS + 4*(b & 3), 4)
            order = range(4) if qs % 2 == 0 else range(3, -1, -1)
            for m, ds in enumerate(order):
                M.append(mfma(d, A(aK + 16*(kt & 1) + 4*ds, 4), V(vQ + 16*qs + 4*ds, 4), V(vC + 4*qs, 4) if m == 0 else d))
        else: M += [None] * 4
        if pv:
            dt = b >> 1
            for h in range(2):
                q2 = 2*(b & 1) + h
                d = A(aO + 16*dt + 4*q2, 4)
                for kk in range(2):
                    ks = kk if h == 0 else 1 - kk
                    M.append(mfma(d, A(aV + 8*(dt & 1) + 4*ks, 4), V(Pc + 8*q2 + 4*ks, 4), "0" if (i == 0 and kk == 0) else d))
        else: M += [None] * 4
        G = [[] for _ in range(8)]
        if b > 0: sm, pb, Pd = qk, b - 1, Pn
        else: sm, pb, Pd = pv, 15, Pc
        if sm:
            s = vS + 4*(pb & 3); pk, pq = pb >> 2, pb & 3
            pd = Pd + 8*pq + 4*(pk >> 1) + 2*(pk & 1)
            for r in range(4): G[2*r].append(f"v_exp_f32 v{s+r}, v{s+r}")
        if b % 2 == 0: G[1].append("s_waitcnt lgkmcnt(1)")
        if b == 11 and qk: G[1].append("@bar")
        dtn = (b >> 1) + 1; vt = i
        if dtn == 8: dtn, vt = 0, i + 1
        if 0 <= vt < NT:
            ks = b & 1; sl = ((vt + 1) & 3) * 16384
            for hf in range(2):
                G[1 + 2*hf].append(f"ds_read_b64_tr_b16 {A(aV + 8*(dtn & 1) + 4*ks + 2*hf, 2)}, v{vAV+dtn} offset:{sl + ks*8192 + hf*4096}")
        if sm: G[3].append(f"v_cvt_pk_bf16_f32 v{pd}, v{s}, v{s+1}")
        u = b + 1; ktn, j, ktile = (u >> 2) + 1, u & 3, i + 1
        if ktn >= 4: ktn, ktile = ktn - 4, i + 2
        if ktile < NT:
            G[5].append(f"ds_read_b128 {A(aK + 16*(ktn & 1) + 4*j, 4)}, v{vAK+j} offset:{(ktile & 3)*16384 + ktn*4096}")
        elif b % 2 == 1: G[7].append("s_waitcnt lgkmcnt(0)")
        if sm: G[7].append(f"v_cvt_pk_bf16_f32 v{pd+1}, v{s+2}, v{s+3}")
        for m in range(8):
            if M[m] is not None: e([M[m]])
            elif m in (3, 7) and sm: e(["s_nop 0"])
            for x in G[m]:
                if x == "@bar":
                    tags = [("it", 8 + i + 2)] + (["h"] if i == 0 else []) + (["poll"] if i == 29 else [])
                    e([f"s_waitcnt vmcnt({e.need(*tags)})", "s_barrier"])
                else: e([x])
            for g, tag in extra.get((b, m), []):
                e([x for x in g if not (cfg.nodma and isvm(x) and 0 < i < 29)], tag)
        sb = (2, 6, 10, 14)
        if pv and b in sb:
            q2 = sb.index(b)
            e([f"v_smfmac_f32_16x16x64_bf16 {A(aL + 4*q2, 4)}, {V(vOnes,4)}, {V(Pc + 8*q2, 8)}, v{vIdx}"])
        if not pv: e(["s_nop 1" if b else "s_nop 6"])

def o_group(n):
    j, qs = n >> 2, n & 3
    E = vP + 8*(n & 1); D = vP + 16 + 4*(n & 3); L = []
    for t in range(2):
        for r in range(4): L.append(f"v_accvgpr_read_b32 v{E+4*t+r}, a{aO + 16*(2*j+t) + 4*qs + r}")
    L += [f"v_mul_f32 v{E+x}, v{E+x}, v{vT+2*qs}" for x in range(8)]
    L += [f"v_cvt_pk_bf16_f32 v{D+x//2}, v{E+x}, v{E+x+1}" for x in range(0, 8, 2)]
    L.append(f"buffer_store_dwordx4 {V(D,4)}, v{vOO+qs}, {S(sO,4)}, 0 offen{off(1024*j)} sc1")
    return L
NO31 = 5
def attn_last(e):
    T = vT; Pc = vP + 32; sl = 0
    ssum = lambda q: f"v_smfmac_f32_16x16x64_bf16 {A(aL + 4*q, 4)}, {V(vOnes,4)}, {V(Pc + 8*q, 8)}, v{vIdx}"
    s = vS + 12; pd = Pc + 24 + 6
    e([ssum(0), f"v_exp_f32 v{s}, v{s}", ssum(1), f"v_exp_f32 v{s+1}, v{s+1}", ssum(2), f"v_exp_f32 v{s+2}, v{s+2}"])
    vm = [(g, ("c", 5)) for g in dma_c(5)] + [(g, ("b", 4)) for g in ld_b(4)] + [(g, ("c", 6)) for g in dma_c(6)] + [(g, ("b", 5)) for g in ld_b(5)]
    vt = []
    for qs in range(4): vt += [f"v_accvgpr_read_b32 v{T+2*qs}, a{aL+4*qs}", f"v_accvgpr_read_b32 v{T+2*qs+1}, a{aL+4*qs+1}"]
    vt += [f"v_add_f32 v{T+2*qs}, v{T+2*qs}, v{T+2*qs+1}" for qs in range(4)]
    vt += [f"v_add_f32 v{T+1}, v{T}, v{T+2}", f"v_add_f32 v{T+3}, v{T+4}, v{T+6}", f"v_add_f32 v{T+1}, v{T+1}, v{T+3}",
           f"v_cmp_nge_f32 vcc, {hx(f2u(2.0**40 if not cfg.forcefb else 2.0))}, v{T+1}"]
    vt += [f"v_rcp_f32 v{T+2*qs}, v{T+2*qs}" for qs in range(4)]
    vt += [f"s_or_b32 s{sT0}, vcc_lo, vcc_hi", f"v_lshlrev_b32 v{T+1}, 2, v1", f"v_mov_b32 v{T+3}, s{sT0}", f"ds_write_b32 v{T+1}, v{T+3} offset:{VOTE}"]
    oq = flat([o_group(n) for n in range(NO31)])
    for b in range(16):
        dt = b >> 1; m = 0
        for h in range(2):
            q2 = 2*(b & 1) + h
            d = A(aO + 16*dt + 4*q2, 4)
            for kk in range(2):
                ks = kk if h == 0 else 1 - kk
                e([mfma(d, A(aV + 8*(dt & 1) + 4*ks, 4), V(Pc + 8*q2 + 4*ks, 4), d)])
                if b == 0: e([[f"v_exp_f32 v{s+3}, v{s+3}"], [f"v_cvt_pk_bf16_f32 v{pd}, v{s}, v{s+1}"], [f"v_cvt_pk_bf16_f32 v{pd+1}, v{s+2}, v{s+3}"], []][m])
                if b % 2 == 0 and dt < 7:
                    e([f"ds_read_b64_tr_b16 {A(aV + 8*((dt+1) & 1) + 2*m, 2)}, v{vAV+dt+1} offset:{sl + (m >> 1)*8192 + (m & 1)*4096}"])
                if vm and (b > 0 or m == 3): e(*vm.pop(0))
                if b >= 3 and b < 6:
                    for _ in range(2):
                        if vt: e([vt.pop(0)])
                if b >= 6:
                    for _ in range(3 if b % 2 else 2 + (m & 1)):
                        if oq: e([oq.pop(0)], "o")
                m += 1
        if b == 1: e([ssum(3)])
        if b % 2 == 1 and b < 15: e(["s_waitcnt lgkmcnt(0)"])
    assert not vm and not vt and not oq
    e(stamp(10))
    e([f"v_mov_b32 v{T+1}, 0", f"s_waitcnt vmcnt({e.need(('c', 0), ('c', 1), ('b', 3))}) lgkmcnt(0)", "s_barrier"])
    e([f"ds_read_b128 {V(vFr+24,4)}, v{T+1} offset:{VOTE}"] + flat([rd_f(gb) for gb in range(3)]))
    e(o_group(NO31), "o")
    r = vFr + 24
    e(["s_waitcnt lgkmcnt(8)", f"v_or_b32 v{r}, v{r}, v{r+1}", f"v_or3_b32 v{r}, v{r}, v{r+2}, v{r+3}", "s_nop 0",
       f"v_readfirstlane_b32 s{sT0}, v{r}", "s_nop 0", f"s_cmp_lg_u32 s{sT0}, 0", "s_cbranch_scc1 L_fallback", "L_nofb:"])

def rd_f(gb):
    n, nt = gb >> 3, gb & 7
    sl = SLOT[n]; o = []
    for ks in range(2):
        for hf in range(2):
            o.append(f"ds_read_b64_tr_b16 {V(vFr + 8*(gb & 3) + 4*ks + 2*hf, 2)}, v{vAC[sl >> 2][nt]} offset:{(sl & 3)*16384 + ks*8192 + hf*4096}")
    return o
SB = []
for c in range(8):
    SB += [(7 + 2*c, nt, 4 + nt, c, kp) for nt in range(4) for kp in range(2)]
    SB += [(8 + 2*c, nt, nt, c, kp) for nt in ((2, 3, 0, 1) if c == 0 else (2, 3)) for kp in range(2)]
SB += [(8 + 2*c, nt, nt, c, kp) for nt in (0, 1) for c in range(1, 8) for kp in range(2)]
def rd_s(x):
    n, nt, _, _, kp = SB[x]
    sl = SLOT[n]; o = []
    for k2 in range(2):
        for hf in range(2):
            o.append(f"ds_read_b64_tr_b16 {V(vFr + 8*(x & 3) + 4*k2 + 2*hf, 2)}, v{vAD + 4*(sl >> 2) + nt} offset:{(sl & 3)*16384 + (2*kp+k2)*4096 + hf*2048}")
    return o
PB = 16384
def part_st(acc, m, p):
    g = [[f"s_xor_b32 s{sT0}, s{sSplit}, {p}", f"s_mul_i32 s{sT0}, s{sT0}, {3*PB}"], [f"s_add_u32 s{sT0}, s{sT0}, {(p-1)*PB + m*PB//2}"]]
    for ql in range(2):
        r = acc + 32*ql + 8*p
        g += one([f"v_cvt_pk_bf16_f32 v{r+x}, v{r+2*x}, v{r+2*x+1}" for x in range(4)])
        g.append([f"buffer_store_dwordx4 {V(r,4)}, v{vPW}, {S(sPw,4)}, s{sT0} offen{off(1024*ql)} sc1"])
    return g
def part_post(stage, p):
    return [[f"s_xor_b32 s{sT1}, s{sSplit}, {p}", f"s_lshl_b32 s{sT1}, s{sT1}, 12"], [f"s_add_u32 s{sT1}, s{sT1}, s{sPf}"] + post(sT1, 512*stage + 128*p)]
def part_ld(acc, m, p):
    g = [[f"s_mul_i32 s{sT0}, s{sSplit}, {3*PB}", f"s_add_u32 s{sT0}, s{sT0}, {(p-1)*PB + m*PB//2}"]]
    for ql in range(2):
        g.append([f"buffer_load_dwordx4 {V(acc + 32*ql + 8*p + 4, 4)}, v{vPW}, {S(sPw,4)}, s{sT0} offen{off(1024*ql)} sc1"])
    return g

def phaseC(e):
    T = vT; U = 224
    pend = []
    def P(groups, tag=None): pend.extend((g, tag) for g in groups)
    def fill():
        if pend: e(*pend.pop(0))
    vq = []
    def vfill():
        if vq: e(*vq.pop(0))
    def bar(need, issue):
        assert not any(t in [("c", m) for m in need] for _, t in vq)
        e([f"s_waitcnt vmcnt({e.need(*[('c', m) for m in need])})", "s_barrier"])
        for m in issue: vq.extend((g, ("c", m)) for g in dma_c(m))
    P(one([f"v_lshrrev_b32 v{U}, 3, v0", f"v_and_b32 v{U+1}, 7, v0", f"v_and_b32 v{U+2}, 6, v{U}", f"v_xor_b32 v{U+1}, v{U+1}, v{U+2}",
           f"v_lshl_add_u32 v{U}, v1, 5, v{U}", f"v_lshlrev_b32 v{U}, 10, v{U}", f"v_lshl_add_u32 v{vDD}, v{U+1}, 4, v{U}"] +
          [f"v_add_u32 v{vDD+j}, {7168*j}, v{vDD}" for j in range(1, 4)]))
    for n in (7, 8): vq.extend((g, ("c", n)) for g in dma_c(n))
    late = [[f"s_and_b32 s{sT0}, s{sSplit}, 1", f"s_lshl_b32 s{sT0}, s{sT0}, 1"]]
    late += one([f"v_lshrrev_b32 v{U}, 2, v2", f"v_and_b32 v{U+1}, 3, v2", f"v_lshl_add_u32 v{U+2}, v3, 2, v{U}",
                 f"v_bfe_u32 v{U+3}, v{U+2}, 1, 2", f"v_xor_b32 v{U+3}, s{sT0}, v{U+3}",
                 f"v_lshlrev_b32 v{U+4}, 7, v{U+2}", f"v_lshl_add_u32 v{U+4}, v{U+1}, 3, v{U+4}"])
    for nt in range(4):
        late += one([f"v_xor_b32 v{U}, {nt}, v{U+3}", f"v_lshl_add_u32 v{vAD+nt}, v{U}, 5, v{U+4}",
                     f"v_add_u32 v{vAD+4+nt}, 65536, v{vAD+nt}", f"v_add_u32 v{vAD+8+nt}, 131072, v{vAD+nt}"])
    opre = two([f"s_lshl_b32 s{sT2}, s{sSplit}, 2", f"s_add_u32 s{sT1}, s{sT2}, s{sWave}", f"s_lshl_b32 s{sT1}, s{sT1}, 3", f"s_and_b32 s{sT2}, s{sHead}, 7",
                f"s_add_u32 s{sT1}, s{sT1}, s{sT2}", f"s_lshl_b32 s{sT1}, s{sT1}, 7", f"s_add_u32 s{sT1}, s{sT1}, {FO}"])
    P(opre + [[f"s_mul_i32 s{sRot}, s{sCb}, {2*4096 if cfg.rot else 0}"]])
    late2 = two([f"s_lshl_b32 s{sT2}, s{sRh}, 2", f"s_add_u32 s{sT2}, s{sT2}, s{sCb}",
                 f"s_lshl_b32 s{sPf}, s{sT2}, 14", f"s_lshl_b32 s{sT0}, s{sWave}, 10", f"s_add_u32 s{sPf}, s{sPf}, s{sT0}", f"s_add_u32 s{sPf}, s{sPf}, {FP}",
                 f"s_lshl_b32 s{sT0}, s{sB}, 3", f"s_add_u32 s{sT0}, s{sT0}, s{sT2}", f"s_mul_i32 s{sT0}, s{sT0}, {4*3*PB}", f"s_add_u32 s{sT0}, s{sT0}, {P_OFF}"])
    late2 += two(srd(sPw, pWS, f"s{sT0}", 4*3*PB))
    late2 += two([f"s_lshl_b32 s{sT0}, s{sB}, 1", f"s_add_u32 s{sT0}, s{sT0}, s{sRh}", f"s_lshl_b32 s{sT0}, s{sT0}, 17", f"s_lshl_b32 s{sT2}, s{sCb}, 2",
                  f"s_add_u32 s{sT2}, s{sT2}, s{sSplit}", f"s_lshl_b32 s{sT2}, s{sT2}, 6"]) + [[f"s_add_u32 s{sT0}, s{sT0}, s{sT2}"]]
    late2 += two(srd(sX, pX, f"s{sT0}", 2097152)) + two(srd(sOut, pOut, f"s{sT0}", 2097152))
    late2 += [[f"s_sub_u32 s{sX+2}, s{sX+2}, s{sT0}", f"s_mov_b32 s{sOut+2}, s{sX+2}"]]
    late2 += one([f"v_lshlrev_b32 v{vPW}, 4, v0", f"v_lshl_add_u32 v{vPW}, v1, 11, v{vPW}",
                  f"v_lshl_add_u32 v{vXo}, v1, 5, v2", f"v_lshlrev_b32 v{vXo}, 10, v{vXo}", f"v_lshl_add_u32 v{vXo}, v3, 3, v{vXo}"])
    e(stamp(11))
    oq = flat([o_group(n) for n in range(NO31 + 1, 16)])
    olast = None
    P(late)
    for n in range(7):
        bk, br = hreg(n)
        for nt in range(8):
            gb = 8*n + nt
            if nt == 5 and n == 1: bar([2, 3], [9, 10])
            if nt == 5 and n == 3: bar([4, 5, 6], [11, 12])
            if nt == 5 and n == 5: bar([6], [13, 14])
            if nt == 5 and n == 6:
                assert not pend
                bar([7, 8], [])
            if olast is not None and gb == olast + cfg.opost:
                e(stamp(23)); e([f"s_waitcnt vmcnt({e.need('o')})"]); e(post(sT1), "sig"); e(stamp(22))
            rds = rd_f(gb + 3) if gb + 3 < 56 else rd_s(gb + 3 - 56)
            k = 0
            busy = bool(oq)
            for ql in range(2):
                d = V(vAccF + 32*ql + 4*nt, 4)
                for kk in range(2):
                    ks = kk if ql == 0 else 1 - kk
                    e([mfma(d, V(vFr + 8*(gb & 3) + 4*ks, 4), R(bk, br + 8*ql + 4*ks, 4), "0" if (n == 0 and kk == 0) else d), rds[k]])
                    for _ in range((cfg.orate + 3 - k) // 4):
                        if oq:
                            e([oq.pop(0)], "o")
                            if not oq: olast = gb
                    if k == 1: fill()
                    if k in (0, 2) and gb >= cfg.wstart: vfill()
                    if k == 3:
                        w = "lgkmcnt(8)"
                        if nt == 7 and n == 3: w = f"vmcnt({e.need(('b', 4), ('b', 5), ('b', 6))}) " + w
                        e([f"s_waitcnt {w}"])
                    k += 1
    assert not pend and not oq and olast + cfg.opost < 56, (len(pend), olast)
    e(stamp(12))
    while vq: vfill()
    e(["s_barrier"])
    for n in (15, 16): e(flat(dma_c(n)), ("c", n))
    e([f"s_lshl_b32 s{sT2}, s{sSplit}, 2", f"s_lshl_b32 s{sT1}, s{sRh}, 1", f"s_lshr_b32 s{sT0}, s{sWave}, 1", f"s_add_u32 s{sT1}, s{sT1}, s{sT0}",
       f"s_add_u32 s{sT1}, s{sT1}, s{sT2}", f"s_lshl_b32 s{sT1}, s{sT1}, 10", f"s_add_u32 s{sT1}, s{sT1}, {FO}", f"v_and_b32 v{T}, 1023, v{vL4}"])
    e(spin(T, sT1), "spin"); e(stamp(13))
    e(flat(ld_o(0)), ("o", 0))
    e(flat(late2))
    for c in range(1, cfg.olead): e(flat(ld_o(c)), ("o", c))
    e([f"s_waitcnt vmcnt({e.need(('o', 0))})"] + stamp(14))
    seen = set()
    issue = {0: [17], 1: [18, 19], 2: [20], 3: [21], 4: [22]}
    for x, (n, nt, at, c, kp) in enumerate(SB):
        if x < 100 and (x == 0 or SB[x - 1][3] != c) and c + cfg.olead < 8:
            vq[0:0] = [(g, ("o", c + cfg.olead)) for g in ld_o(c + cfg.olead)] if not (vq and vq[0][1] and vq[0][1][0] == "o") else []
            assert vq[0][1] == ("o", c + cfg.olead)
        if x + 3 < 100 and SB[x + 3][3] != SB[x + 2][3]: bar([9 + 2*c, 10 + 2*c], issue.get(c, []))
        if x == 2:
            for p in (1, 2, 3): P(part_st(vAccF, 0, p), "pf")
        if x == 62:
            e([f"s_waitcnt vmcnt({e.need('pf')})"])
            for p in (1, 2, 3): P(part_post(0, p), "sig")
            P([[f"buffer_load_dwordx2 {V(T+2*y,2)}, v{vXo}, {S(sX,4)}, s{sCnt} offen{off(32*(y & 1))}"] if y & 1 else
               [f"s_mov_b32 s{sCnt}, {16384*(y >> 1)}", f"buffer_load_dwordx2 {V(T+2*y,2)}, v{vXo}, {S(sX,4)}, s{sCnt} offen"] for y in range(4)], "xr")
            P([[f"s_lshl_b32 s{sT2}, s{sSplit}, 12", f"s_add_u32 s{sT2}, s{sT2}, s{sPf}"], [f"v_and_b32 v{U}, 384, v{vL4}"], [f"v_max_u32 v{U}, 128, v{U}"]])
        if x == 84:
            assert not pend
            P([[f"buffer_load_dword v{vPoll}, v{U}, {S(sFlag,4)}, s{sT2} offen sc1"]], "poll")
        if x == 93:
            e([f"s_waitcnt vmcnt({e.need('poll')})", f"v_cmp_ne_u32 vcc, s{sTag}, v{vPoll}", "s_cbranch_vccnz L_fwait", "L_fok:"])
            for p in (1, 2, 3): P(part_ld(vAccF, 0, p), ("g", 0))
        if x == 97:
            assert not pend
            for p in (2, 3, 1): P(part_st(vAccS, 1, p), "ps")
        if x == 100: e(stamp(15))
        if x in (16, 40, 64, 92, 94): e(stamp({16: 24, 40: 25, 64: 26, 92: 28, 94: 29}[x]))
        if x == 118:
            assert not pend
            e([f"s_waitcnt vmcnt({e.need('ps')})"])
            for p in (1, 2, 3): P(part_post(1, p), "sig")
        rds = rd_s(x + 3) if x + 3 < len(SB) else []
        k = 0
        for qq in range(2):
            ql = qq if kp == 0 else 1 - qq
            d = V(vAccS + 32*ql + 4*at, 4)
            for kk in range(2):
                k2 = kk if qq == 0 else 1 - kk
                first = (ql, at) not in seen; seen.add((ql, at))
                e([mfma(d, V(vFr + 8*(x & 3) + 4*k2, 4), A(32*c + 16*ql + 4*(2*kp + k2), 4), "0" if first else d)])
                if rds: e([rds[k]])
                if k == 0 and vq: vfill()
                elif k == 2 and vq and x % 3 == 0: vfill()
                elif k == 1 or (k < 3 and x >= 93): fill()
                if k == 3:
                    left = len(SB) - 1 - x
                    w = f"lgkmcnt({4*min(2, max(0, left - 1))})" if left > 0 else ""
                    if x < 99 and SB[x + 1][3] != c: w = f"vmcnt({e.need(('o', c + 1))}) " + w
                    if w: e([f"s_waitcnt {w}"])
                k += 1
    assert not pend and not vq
    e(stamp(17))
    F_, S_, E_, X_ = vAccF, vAccS, 192, 208
    rg = lambda b, x: b + 32*(x >> 3) + (x & 7)
    e([f"s_mov_b32 s{sT0}, {hx(f2u(-LOG2E))}", f"s_mov_b32 s{sT1}, 0xffff0000"])
    def addup(b):
        for p in (1, 2, 3):
            for ql in range(2):
                r = b + 32*ql + 8*p + 4; t = 240 + 8*ql
                for y in range(4): e([f"v_lshlrev_b32 v{t+2*y}, 16, v{r+y}", f"v_and_b32 v{t+2*y+1}, s{sT1}, v{r+y}"])
                for y in range(4): e([f"v_pk_add_f32 {V(b+32*ql+2*y,2)}, {V(b+32*ql+2*y,2)}, {V(t+2*y,2)}"])
    addup(F_)
    for x in range(16): e([f"v_mul_f32 v{E_+x}, s{sT0}, v{rg(F_,x)}"])
    for x in range(16): e([f"v_exp_f32 v{E_+x}, v{E_+x}"])
    for x in range(0, 16, 2): e([f"v_pk_add_f32 {V(E_+x,2)}, {V(E_+x,2)}, 1.0 op_sel_hi:[1,0]"])
    e(spin(U, sT2, 512), "spin"); e(stamp(18))
    for p in (1, 2, 3): e(flat(part_ld(vAccS, 1, p)), ("g", 1))
    for x in range(16): e([f"v_rcp_f32 v{E_+x}, v{E_+x}"])
    for p in range(8): e([f"v_lshlrev_b32 v{X_+2*p}, 16, v{T+p}", f"v_and_b32 v{X_+2*p+1}, s{sT1}, v{T+p}"])
    for x in range(0, 16, 2): e([f"v_pk_mul_f32 {V(E_+x,2)}, {V(rg(F_,x),2)}, {V(E_+x,2)}"])
    e([f"s_movk_i32 s{sCnt}, 16384", "s_waitcnt vmcnt(0)"]); addup(S_)
    for x in range(0, 16, 2): e([f"v_pk_fma_f32 {V(X_+x,2)}, {V(E_+x,2)}, {V(rg(S_,x),2)}, {V(X_+x,2)}"])
    for p in range(8): e([f"v_cvt_pk_bf16_f32 v{T+p}, v{X_+2*p}, v{X_+2*p+1}"])
    for y in range(4): e([f"buffer_store_dwordx2 {V(T+2*y,2)}, v{vXo}, {S(sOut,4)}, {'s%d' % sCnt if y >> 1 else '0'} offen{off(32*(y & 1))}{['', ' sc1', ' nt', ' sc0 sc1'][cfg.outmod]}"], "out")
    e(stamp(19) + stamp_flush())

def cold_paths():
    L = []
    L += ["L_hwait:", f"s_movk_i32 s{sT1}, {FH}"] + spin(vT + 1, sT1) + ["s_branch L_hok"]
    L += ["L_fwait:"] + spin(224, sT2) + ["s_branch L_fok"]
    T = vT
    F = ["L_fallback:", f"s_cmp_lg_u32 s{sRetry}, 0", "s_cbranch_scc1 L_nofb", f"s_mov_b32 s{sRetry}, 1", f"s_mov_b32 s{sTile}, 0"]
    F += [f"v_mov_b32 v{T+qs}, 0xff800000" for qs in range(4)]
    B = ["s_waitcnt vmcnt(0) lgkmcnt(0)", "s_barrier"]
    g = dma_k(0, f"s{sTile}"); B += g[0] + ["s_nop 0"] + flat(g[1:]) + ["s_waitcnt vmcnt(0)", "s_barrier"]
    for kt in range(4):
        B += [f"ds_read_b128 {A(aK + 4*ds, 4)}, v{vAK+ds} offset:{kt*4096}" for ds in range(4)] + ["s_waitcnt lgkmcnt(0)"]
        for qs in range(4):
            d = V(vS + 4*qs, 4)
            B += [mfma(d, A(aK + 4*ds, 4), V(vQ + 16*qs + 4*ds, 4), "0" if ds == 0 else d) for ds in range(4)]
        B += ["s_nop 7"]
        for qs in range(4):
            s = vS + 4*qs
            B += [f"v_max3_f32 v{T+qs}, v{T+qs}, v{s}, v{s+1}", f"v_max3_f32 v{T+qs}, v{T+qs}, v{s+2}, v{s+3}"]
    B += [f"s_add_u32 s{sTile}, s{sTile}, 16384", f"s_cmp_lt_u32 s{sTile}, {NT*16384}"]
    E = ["s_barrier"]
    g = dma_k(0, "0"); E += g[0] + [f"s_movk_i32 s{sTile}, 16384"] + flat(g[1:])
    g = dma_k(1, f"s{sTile}"); E += g[0] + [f"s_movk_i32 s{sTile+1}, 0"] + flat(g[1:])
    g = dma_v(1, "0"); E += g[0] + ["s_nop 0"] + flat(g[1:])
    E += ["s_waitcnt vmcnt(0)", "s_barrier"]
    E += [f"ds_read_b128 {A(aK + 4*ds, 4)}, v{vAK+ds}" for ds in range(4)] + ["s_waitcnt lgkmcnt(0)"]
    L += F + ["L_fb_loop:"] + B + ["s_cbranch_scc1 L_fb_loop"] + E + ["s_branch L_attn"]
    return L, F + B + B + E

def gen():
    e = Em()
    setup(e); phaseA(e)
    pre = e.take()
    e(["L_attn:"]); max_to_c(e); e(stamp(7))
    attn_iter(e, -1); attn_iter(e, 0); e(stamp(8))
    head = e.take()
    its = {}
    for i in range(1, 29):
        attn_iter(e, i); its[i] = e.take()
    blk = flat([its[i] for i in range(1, 5)])
    for r in range(7): assert flat([its[i] for i in range(1 + 4*r, 5 + 4*r)]) == blk, r
    e(stamp(9))
    for i in range(29, NT - 1):
        attn_iter(e, i); e(stamp(i - 9))
    attn_last(e); phaseC(e)
    tail = e.take()
    cold, fbtrace = cold_paths()
    loopctl = [f"s_sub_u32 s{sLoop}, s{sLoop}, 1", f"s_cmp_lg_u32 s{sLoop}, 0", "s_cbranch_scc1 L_attn_loop"]
    text = pre + head + [f"s_movk_i32 s{sLoop}, 7", "L_attn_loop:"] + blk + loopctl + tail + ["L_end:", "s_endpgm"] + cold
    nt = lambda L: [x for x in L if ";nt" not in x]
    trace = nt(pre + head + blk + loopctl + blk + loopctl + tail)
    k = tail.index("L_nofb:")
    trace2 = nt(tail[k-60:k] + fbtrace + head)
    return text, [trace, trace2]

def main(path):
    hdr = open(f"cdna_kernels/{NAME}.s.ref").read().split("\n")
    hdr = [h for h in hdr if h.startswith(";") and "@launch" not in h]
    kn = NAME + "_kernel"
    text, traces = gen()
    bad = 0
    for t in traces:
        pr = check(t, "k")
        for p in pr[:30]: print(p)
        bad += len(pr)
    out = hdr + ["; @launch grid=(256,1,1) block=(256,1,1) lds=163840", '.amdgcn_target "amdgcn-amd-amdhsa--gfx950"', ".text",
                 f".globl {kn}", ".p2align 8", f".type {kn},@function", f"{kn}:"] + [x.replace(" ;nt", "") for x in text]
    out += ['.section .rodata,"a"', ".p2align 6", f".amdhsa_kernel {kn}", "  .amdhsa_next_free_vgpr 512", "  .amdhsa_next_free_sgpr 102",
            "  .amdhsa_accum_offset 256", "  .amdhsa_group_segment_fixed_size 0", "  .amdhsa_kernarg_size 96",
            "  .amdhsa_user_sgpr_count 2", "  .amdhsa_user_sgpr_kernarg_segment_ptr 1",
            "  .amdhsa_system_sgpr_workgroup_id_x 1", ".end_amdhsa_kernel"]
    open(path, "w").write("\n".join(out) + "\n")
    print("problems:", bad, "lines:", len(out))
if __name__ == "__main__":
    args = [a for a in sys.argv[1:] if not a.startswith("--")]
    for a in sys.argv[1:]:
        if a.startswith("--"):
            kv = a[2:].split("=")
            assert hasattr(cfg, kv[0]), kv
            setattr(cfg, kv[0], int(kv[1]) if len(kv) > 1 else True)
    main(args[0] if args else f"cdna_kernels/{NAME}.s")
```

```python
NAME = "recurrent_scan__mha_block_cached__glu_gated_swiglu__prompt"
def gen(path, body, iters=96, waves=4, pre=[], lds=65536):
    L = []
    A = L.append
    nv = 512 if waves == 4 else 256
    acc_off = 256 if waves == 4 else 128
    A(f"; @launch grid=(256,1,1) block=({waves*64},1,1) lds={lds}")
    A('.amdgcn_target "amdgcn-amd-amdhsa--gfx950"')
    A(".text"); A(f".globl {NAME}_kernel"); A(".p2align 8"); A(f".type {NAME}_kernel,@function"); A(f"{NAME}_kernel:")
    A("s_cmp_ge_u32 s2, 256"); A("s_cbranch_scc1 L_end")
    A("s_load_dwordx4 s[28:31], s[0:1], 8")
    A("s_load_dwordx2 s[6:7], s[0:1], 88")
    A("s_waitcnt lgkmcnt(0)")
    A("s_mov_b32 s8, s28"); A("s_mov_b32 s9, s29"); A("s_mov_b32 s10, 16777216"); A("s_mov_b32 s11, 0x20000")
    A("s_mov_b32 s32, s30"); A("s_mov_b32 s33, s31"); A("s_mov_b32 s34, 16777216"); A("s_mov_b32 s35, 0x20000")
    A("s_mov_b32 s12, s6"); A("s_mov_b32 s13, s7"); A("s_mov_b32 s14, 268435456"); A("s_mov_b32 s15, 0x20000")
    A("v_lshlrev_b32 v1, 4, v0")
    A("v_and_b32 v2, 63, v0"); A("v_lshlrev_b32 v2, 4, v2")
    A("v_lshrrev_b32 v3, 6, v0"); A("s_nop 0"); A("v_readfirstlane_b32 s40, v3")
    A("s_and_b32 s41, s2, 7"); A("s_lshl_b32 s41, s41, 21")
    A("s_lshl_b32 s3, s2, 16")
    for i in range(24):
        srd = "s[8:11]" if i < 16 else "s[32:35]"
        A(f"buffer_load_dwordx4 v[{8+4*i}:{11+4*i}], v1, {srd}, s3 offen")
        A("s_add_u32 s3, s3, 2048")
    A("s_waitcnt vmcnt(0)")
    for i in range(lds // (waves * 1024)):
        A(f"ds_write_b128 v1, v[{8+4*(i%16)}:{11+4*(i%16)}] offset:{(i*waves*1024) % 65536}") if i*waves*1024 < 65536 else None
    for i in range(acc_off if waves == 8 else 256):
        A(f"v_accvgpr_write_b32 a{i}, 0")
    for i in range(104, acc_off): A(f"v_mov_b32 v{i}, 0")
    for p in pre: A(p)
    A("s_waitcnt lgkmcnt(0)")
    A("s_nop 4")
    A("s_barrier")
    A("s_memtime s[20:21]"); A("s_memrealtime s[22:23]"); A("s_waitcnt lgkmcnt(0)")
    A(f"s_mov_b32 s16, {iters}")
    A(".p2align 6")
    A("L_loop:")
    for b in body: A(b)
    A("s_sub_u32 s16, s16, 1"); A("s_cmp_lg_u32 s16, 0"); A("s_cbranch_scc1 L_loop")
    A("L_loop_end:")
    A("s_nop 15"); A("s_nop 15"); A("s_waitcnt vmcnt(0) lgkmcnt(0)")
    A("s_memtime s[24:25]"); A("s_memrealtime s[26:27]"); A("s_waitcnt lgkmcnt(0)")
    A("s_sub_u32 s24, s24, s20"); A("s_sub_u32 s26, s26, s22")
    A("v_mov_b32 v4, s24"); A("v_mov_b32 v5, s26"); A("v_mov_b32 v6, s22"); A("v_accvgpr_read_b32 v7, a0")
    A("s_lshl_b32 s3, s2, 13")
    A("buffer_store_dwordx4 v[4:7], v1, s[12:15], s3 offen")
    A("s_waitcnt vmcnt(0)")
    A("L_end:"); A("s_endpgm")
    A('.section .rodata,"a"'); A(".p2align 6"); A(f".amdhsa_kernel {NAME}_kernel")
    A(f".amdhsa_next_free_vgpr {nv}"); A(".amdhsa_next_free_sgpr 96"); A(f".amdhsa_accum_offset {acc_off}")
    A(".amdhsa_group_segment_fixed_size 0"); A(".amdhsa_kernarg_size 96"); A(".amdhsa_user_sgpr_count 2")
    A(".amdhsa_user_sgpr_kernarg_segment_ptr 1"); A(".amdhsa_system_sgpr_workgroup_id_x 1"); A(".end_amdhsa_kernel")
    open(path, "w").write("\n".join(L) + "\n")
def fr(i): return f"v[{8+4*i}:{11+4*i}]"
def m16(t, a, b, reg="a", base=0): return f"v_mfma_f32_16x16x32_bf16 {reg}[{base+4*t}:{base+4*t+3}], {fr(a)}, {fr(b)}, {reg}[{base+4*t}:{base+4*t+3}]"
def m32(t, a, b, reg="a", base=0): return f"v_mfma_f32_32x32x16_bf16 {reg}[{base+16*t}:{base+16*t+15}], {fr(a)}, {fr(b)}, {reg}[{base+16*t}:{base+16*t+15}]"
```

```python
import sys; sys.path.insert(0, "bench")
from blib import *
D = "out21/"
import os, shutil; shutil.rmtree(D, ignore_errors=True); os.makedirs(D)
def touch(nbytes):
    L = ["s_getpc_b64 s[48:49]", "L_pc:", "s_mov_b32 s50, L_end-L_pc", "s_mov_b32 s51, 0x20000", "v_lshlrev_b32 v5, 7, v0"]
    for j in range((nbytes + 32767) // 32768):
        L += [f"s_mov_b32 s47, {j * 32768}", "buffer_load_dword v6, v5, s[48:51], s47 offen"]
    return L + ["s_waitcnt vmcnt(0)", "s_barrier"]
def mk(name, period, lines, dens):
    n = 256; pads = [k for k in range(n) if (k % (period // 128)) in lines]
    body = ["s_branch L_body", ".p2align 12", "L_body:"]
    for k in range(n):
        cnt = 16
        if k in pads:
            j = pads.index(k)
            body += [f"L_pad{j}:", f"s_cbranch_execz {'L_walked' if j + 1 == len(pads) else 'L_pad%d' % (j+1)}", "s_nop 0"]; cnt = 15
        for i in range(cnt):
            body.append(f"v_cvt_pk_bf16_f32 v{200 + i % 8}, v8, v9" if dens == 2 or i % 2 else m16(i % 32, i % 8, 8 + i % 8))
    walk = ["s_mov_b64 exec, 0", "s_branch L_pad0", "L_walked:", "s_mov_b64 exec, -1", "s_barrier"] if pads else []
    gen(D + name + ".s", body, iters=1, pre=touch(44000) + walk)
for dens in (2, 1):
    mk(f"d{dens}_none", 4096, [], dens)
    mk(f"d{dens}_4k_0", 4096, [0], dens)
    mk(f"d{dens}_4k_01", 4096, [0, 1], dens)
    mk(f"d{dens}_4k_0123", 4096, [0, 1, 2, 3], dens)
    mk(f"d{dens}_4k_mid", 4096, [16, 17, 18, 19], dens)
    mk(f"d{dens}_2k_01", 2048, [0, 1], dens)
    mk(f"d{dens}_1k_01", 1024, [0, 1], dens)
    mk(f"d{dens}_all", 128, [0], dens)
```

```python
import sys; sys.path.insert(0, "bench")
from blib import *
D = "out22/"
import os, shutil; shutil.rmtree(D, ignore_errors=True); os.makedirs(D)
def mk(name, lo, skip, kind):
    pre = ["s_lshl_b32 s42, s2, 2", "s_add_u32 s42, s42, s40", "v_mov_b32 v4, v2"]
    def ops(k, mods):
        b = []
        for j in range(8):
            b += [f"s_add_u32 s43, s42, {j*1024}", f"s_and_b32 s44, s43, {(1 << lo) - 1}", "s_lshl_b32 s44, s44, 10", f"s_lshr_b32 s43, s43, {lo}", f"s_lshl_b32 s43, s43, {10+lo+skip}",
                  "s_add_u32 s47, s43, s44", "s_add_u32 s47, s47, 0x4000000"]
            b.append(f"buffer_store_dwordx4 v[{8+4*j}:{11+4*j}], v4, s[12:15], s47 offen sc1" if k == "st" else f"buffer_load_dwordx4 a[{4*j}:{3+4*j}], v4, s[12:15], s47 offen sc1")
        return b
    slp = ["s_waitcnt vmcnt(0)"] + ["s_sleep 127"] * 4
    if kind == "st": gen(D + name + ".s", ops("st", ""), iters=1, pre=pre + slp)
    else: gen(D + name + ".s", ops("ld", ""), iters=1, pre=pre + ops("st", "") + slp)
for kind in ("st", "ld"):
    mk(f"{kind}_dense", 0, 0, kind)
    for lo in (0, 2, 4, 6, 8, 10):
        mk(f"{kind}_fix2bits_at{10+lo}", lo, 2, kind)
    mk(f"{kind}_fix4bits_at10", 0, 4, kind)
    mk(f"{kind}_fix4bits_at12", 2, 4, kind)
```

```python
import sys; sys.path.insert(0, "bench")
from blib import *
D = "out26/"
import os, shutil; shutil.rmtree(D, ignore_errors=True); os.makedirs(D)
def mk(name, lanecode, n=64, depth=12, extra=0):
    pre0 = ["v_and_b32 v7, 63, v0"] + lanecode + ["v_lshlrev_b32 v4, 4, v4", "v_lshlrev_b32 v5, 10, v5", "v_add_u32 v4, v4, v5",
           "s_lshr_b32 s43, s2, 3", "s_and_b32 s42, s43, 7", "s_lshl_b32 s42, s42, 7", f"s_add_u32 s42, s42, {extra}", "s_lshl_b32 s44, s40, 13", "s_add_u32 s42, s42, s44", "s_lshl_b32 s45, s40, 12", "s_mov_b32 m0, s45"]
    def body(base):
        b = []
        for j in range(n):
            b += [f"s_add_u32 s47, {base}, {j << 15}", "buffer_load_dwordx4 v4, s[8:11], s47 offen lds", f"s_waitcnt vmcnt({depth})"]
        return b
    pre = pre0 + ["s_add_u32 s48, s2, 1", "s_and_b32 s48, s48, 7", "s_lshl_b32 s48, s48, 21", "s_add_u32 s48, s48, s42", "s_add_u32 s49, s41, s42"]
    gen(D + name + ".s", body("s49"), iters=1, pre=pre + body("s48") + ["s_waitcnt vmcnt(0)"] + ["s_sleep 127"] * 4)
mk("normal", ["v_lshrrev_b32 v5, 3, v7", "v_and_b32 v4, 7, v7"])
mk("swaphalf", ["v_lshrrev_b32 v5, 3, v7", "v_and_b32 v4, 7, v7", "v_xor_b32 v4, 4, v4"])
mk("reverse", ["v_lshrrev_b32 v5, 3, v7", "v_and_b32 v4, 7, v7", "v_xor_b32 v4, 7, v4"])
mk("apart", ["v_lshrrev_b32 v5, 2, v7", "v_and_b32 v5, 7, v5", "v_and_b32 v4, 3, v7", "v_lshrrev_b32 v6, 5, v7", "v_lshl_add_u32 v4, v6, 2, v4"])
mk("mixq", ["v_lshrrev_b32 v5, 3, v7", "v_and_b32 v4, 1, v7", "v_lshlrev_b32 v4, 2, v4", "v_bfe_u32 v6, v7, 1, 2", "v_add_u32 v4, v4, v6"])
mk("rowrev", ["v_lshrrev_b32 v5, 3, v7", "v_xor_b32 v5, 7, v5", "v_and_b32 v4, 7, v7"])
```

```python
import sys; sys.path.insert(0, "bench")
from blib import *
D = "out27/"
import os, shutil; shutil.rmtree(D, ignore_errors=True); os.makedirs(D)
def mk(name, offs, extra=0, depth=12, op="buffer_load_dwordx4 v4, s[8:11], s47 offen lds", lanes=("v_lshrrev_b32 v5, 2, v7", "v_and_b32 v4, 3, v7", "v_lshlrev_b32 v4, 4, v4"), wsh=14):
    pre0 = ["v_and_b32 v7, 63, v0"] + list(lanes) + ["v_lshlrev_b32 v5, 10, v5", "v_add_u32 v4, v4, v5",
           "s_lshr_b32 s43, s2, 3", "s_and_b32 s42, s43, 7", "s_lshl_b32 s42, s42, 7", f"s_add_u32 s42, s42, {extra}", f"s_lshl_b32 s44, s40, {wsh}", "s_add_u32 s42, s42, s44", "s_lshl_b32 s45, s40, 12", "s_mov_b32 m0, s45"]
    def body(base):
        b = []
        for o in offs: b += [f"s_add_u32 s47, {base}, {o}", op, f"s_waitcnt vmcnt({depth})"]
        return b
    pre = pre0 + ["s_add_u32 s48, s2, 1", "s_and_b32 s48, s48, 7", "s_lshl_b32 s48, s48, 21", "s_add_u32 s48, s48, s42", "s_add_u32 s49, s41, s42"]
    gen(D + name + ".s", body("s49"), iters=1, pre=pre + body("s48") + ["s_waitcnt vmcnt(0)"] + ["s_sleep 127"] * 4)
mk("half_lo", [j << 16 for j in range(32)], 0)
mk("half_hi", [j << 16 for j in range(32)], 64)
mk("both_seq", [(j >> 1 << 16) + 64 * (j & 1) for j in range(64)], 0)
mk("straddle", [j << 15 for j in range(63)], 64, lanes=("v_lshrrev_b32 v5, 3, v7", "v_and_b32 v4, 7, v7", "v_lshlrev_b32 v4, 4, v4"), wsh=13)
mk("global_lds", [j << 15 for j in range(64)], 0, op="s_add_u32 s50, s28, s47\ns_addc_u32 s51, s29, 0\nglobal_load_lds_dwordx4 v4, s[50:51]", lanes=("v_lshrrev_b32 v5, 3, v7", "v_and_b32 v4, 7, v7", "v_lshlrev_b32 v4, 4, v4"), wsh=13)
```
